```python
import torch

def _softmax(x, axis=-1):
    return torch.softmax(x, dim=axis)
def _gelu(x):
    return torch.nn.functional.gelu(x, approximate="tanh")
def _silu(x):
    return torch.nn.functional.silu(x)
def _sigmoid(x):
    return torch.sigmoid(x)
def _layernorm(x, axis=-1, eps=1e-5):
    m = x.mean(dim=axis, keepdim=True)
    v = x.var(dim=axis, keepdim=True, unbiased=False)
    return (x - m) / torch.sqrt(v + eps)
def _scatter_add(tgt, idx, src, axis=0):
    return tgt.clone().index_add_(axis, idx, src)
def _segment_sum(src, seg, n):
    out = torch.zeros((n,) + src.shape[1:], dtype=src.dtype)
    return out.index_add_(0, seg, src)
def _pad(x, pw):
    flat = tuple(v for pair in reversed(pw) for v in pair)
    return torch.nn.functional.pad(x, flat)

kernel_name = 'gated_mix__ssm_conv_s5__ssm_conv_h3__prompt'

def setup_inputs():

    _w = (lambda a: (lambda t: t.to(torch.bfloat16) if t.is_floating_point() else t)(torch.as_tensor(a)))
    def _A_setup():
        B, S, D = 1, 2048, 1024
        P = D
        Lambda_re = -0.5 * (lambda _x: torch.exp(torch.as_tensor(_x)))((lambda *s: torch.randn(*s, dtype=torch.bfloat16) * 0.2)(P))
        Lambda_im = (lambda *s: torch.randn(*s, dtype=torch.bfloat16) * 0.4)(P) * 1.0
        B_re = (lambda *s: torch.randn(*s, dtype=torch.bfloat16) * 0.2)(P, D) * (D ** -0.5)
        B_im = (lambda *s: torch.randn(*s, dtype=torch.bfloat16) * 0.2)(P, D) * (D ** -0.5)
        C_re = (lambda *s: torch.randn(*s, dtype=torch.bfloat16) * 0.2)(D, P) * (P ** -0.5)
        C_im = (lambda *s: torch.randn(*s, dtype=torch.bfloat16) * 0.2)(D, P) * (P ** -0.5)
        log_dt = (lambda *s: torch.randn(*s, dtype=torch.bfloat16) * 0.2)(P) * 0.3 - 2.0
        Dskip = (lambda *s: torch.randn(*s, dtype=torch.bfloat16) * 0.05)(D)
        return {
            "x": _w((lambda *s: torch.randn(*s, dtype=torch.bfloat16) * 0.05)(B, S, D)),
            "Lambda_re": _w(Lambda_re),
            "Lambda_im": _w(Lambda_im),
            "B_re": _w(B_re),
            "B_im": _w(B_im),
            "C_re": _w(C_re),
            "C_im": _w(C_im),
            "log_dt": _w(log_dt),
            "Dskip": _w(Dskip),
        }
    _A_in = _A_setup()

    def _B_setup():
        B, S, D = 1, 2048, 1024
        ks = 4
        return {
            "q": _w((lambda *s: torch.randn(*s, dtype=torch.bfloat16) * 0.05)(B, S, D)),
            "k": _w((lambda *s: torch.randn(*s, dtype=torch.bfloat16) * 0.4)(B, S, D)),
            "v": _w((lambda *s: torch.randn(*s, dtype=torch.bfloat16) * 0.2)(B, S, D)),
            "shift_k": _w((lambda *s: torch.randn(*s, dtype=torch.bfloat16) * 0.4)(D, ks) * 0.5),
            "ssm_k": _w((lambda *s: torch.randn(*s, dtype=torch.bfloat16) * 0.4)(D, S) * (1.0 / S ** 0.5)),
            "ssm_D": _w((lambda *s: torch.randn(*s, dtype=torch.bfloat16) * 0.2)(D)),
        }
    _B_in = _B_setup()

    return {
        "A_x": _A_in["x"],
        "A_Lambda_re": _A_in["Lambda_re"],
        "A_Lambda_im": _A_in["Lambda_im"],
        "A_B_re": _A_in["B_re"],
        "A_B_im": _A_in["B_im"],
        "A_C_re": _A_in["C_re"],
        "A_C_im": _A_in["C_im"],
        "A_log_dt": _A_in["log_dt"],
        "A_Dskip": _A_in["Dskip"],
        "B_q": _B_in["q"],
        "B_k": _B_in["k"],
        "B_v": _B_in["v"],
        "B_shift_k": _B_in["shift_k"],
        "B_ssm_k": _B_in["ssm_k"],
        "B_ssm_D": _B_in["ssm_D"],
        "gate_w": _w((lambda *s: torch.randn(*s, dtype=torch.bfloat16) * 0.05)(1024) * 16.0),
    }

def reference(A_x, A_Lambda_re, A_Lambda_im, A_B_re, A_B_im, A_C_re, A_C_im, A_log_dt, A_Dskip, B_q, B_k, B_v, B_shift_k, B_ssm_k, B_ssm_D, gate_w):
    def _A_ref(x, Lambda_re, Lambda_im, B_re, B_im, C_re, C_im, log_dt, Dskip):
        Bsz, L, H = x.shape
        Lam = Lambda_re + 1j * Lambda_im
        Bmat = B_re + 1j * B_im
        Cmat = C_re + 1j * C_im
        dt = torch.exp(log_dt)
        Lam_bar = torch.exp(dt * Lam)
        B_bar = ((Lam_bar - 1.0) / Lam)[:, None] * Bmat
        Bu = torch.einsum("bld,pd->blp", x + 0j, B_bar)
        h = torch.zeros_like(Bu[:, 0, :])
        hs = []
        for t in range(L):
            h = Lam_bar[None, :] * h + Bu[:, t, :]
            hs.append(h)
        hseq = torch.stack(hs, 1)
        y = 2.0 * torch.einsum("blp,dp->bld", hseq, Cmat).real + x * Dskip[None, None, :]
        return y

    def _B_ref(q, k, v, shift_k, ssm_k, ssm_D):
        B, S, D = q.shape
        ks = shift_k.shape[-1]
        k_pad = _pad(k, ((0, 0), (ks - 1, 0), (0, 0)))
        k_shift = torch.zeros_like(k)
        for t in range(ks):
            k_shift = k_shift + k_pad[:, t:t + S, :] * shift_k[:, ks - 1 - t][None, None, :]
        kv = k_shift * v
        L = 2 * S
        kv_pad = _pad(kv, ((0, 0), (0, S), (0, 0)))
        kf_pad = _pad(ssm_k, ((0, 0), (0, S)))
        kv_f = (lambda x, axes=(-2,-1): torch.fft.rfft2(x.float(), dim=axes))(kv_pad[:, None, :, :], axes=(1, 2))
        kf_f = (lambda x, axes=(-2,-1): torch.fft.rfft2(x.float(), dim=axes))(kf_pad[:, None, :], axes=(1, 2))
        kf_f = (lambda x, *d: x.permute(*d))(kf_f, 1, 2, 0)
        y_f = kv_f * kf_f[None, :, :, :]
        y = (lambda x, s, axes=(-2,-1): torch.fft.irfft2(x, s=s, dim=axes).to(torch.bfloat16))(y_f, (1, L), axes=(1, 2))[:, 0, :S, :]
        y = y + kv * ssm_D[None, None, :]
        return q * y

    x = A_x
    g = _sigmoid((x * gate_w).sum(-1, keepdims=True))
    a = _A_ref(x, A_Lambda_re, A_Lambda_im, A_B_re, A_B_im, A_C_re, A_C_im, A_log_dt, A_Dskip)
    b = _B_ref(x, B_k, B_v, B_shift_k, B_ssm_k, B_ssm_D)
    return g * a + (1 - g) * b
```

```python
import re

class Reg:
    def __init__(self, kind, base, n=1):
        self.kind, self.base, self.n = kind, base, n
    def __str__(self):
        if self.n == 1:
            return f"{self.kind}{self.base}"
        return f"{self.kind}[{self.base}:{self.base + self.n - 1}]"
    __repr__ = __str__
    def __format__(self, spec):
        return str(self)
    def __getitem__(self, i):
        if isinstance(i, slice):
            a = i.start or 0
            b = self.n if i.stop is None else i.stop
            assert 0 <= a < b <= self.n, (a, b, self.n)
            return Reg(self.kind, self.base + a, b - a)
        assert 0 <= i < self.n, (i, self.n)
        return Reg(self.kind, self.base + i, 1)
    def __len__(self):
        return self.n
    def regs(self):
        return [(self.kind, self.base + i) for i in range(self.n)]


class Alloc:
    def __init__(self, kind, lo, hi):
        self.kind, self.lo, self.hi = kind, lo, hi
        self.used = [False] * hi
        self.high = lo
        self.names = {}
    def alloc(self, n=1, align=None, name=None):
        if align is None:
            align = 1 if n == 1 else 2
        b = self.lo
        while True:
            b = (b + align - 1) // align * align
            if b + n > self.hi:
                raise RuntimeError(f"out of {self.kind} registers allocating {n} ({name})")
            if not any(self.used[b:b + n]):
                break
            b += 1
        for i in range(b, b + n):
            self.used[i] = True
        self.high = max(self.high, b + n)
        r = Reg(self.kind, b, n)
        if name:
            self.names[name] = r
        return r
    def free(self, *rs):
        for r in rs:
            assert r.kind == self.kind
            for i in range(r.base, r.base + r.n):
                assert self.used[i], f"double free {r}"
                self.used[i] = False
    def nfree(self):
        return sum(1 for i in range(self.lo, self.hi) if not self.used[i])


_REG_RE = re.compile(r"(?<![\w.])([vas])\[(\d+):(\d+)\]|(?<![\w.])([vas])(\d+)(?![\w.\[])")
TRANS = ("v_exp_", "v_log_", "v_rcp_", "v_rsq_", "v_sqrt_", "v_sin_", "v_cos_")


def regs_of(s):
    out = []
    for m in _REG_RE.finditer(s):
        if m.group(1):
            out += [(m.group(1), i) for i in range(int(m.group(2)), int(m.group(3)) + 1)]
        else:
            out.append((m.group(4), int(m.group(5))))
    if re.search(r"\bvcc(_lo|_hi)?\b", s): out += [("x", "vcc")]
    if re.search(r"\bexec(_lo|_hi)?\b", s): out += [("x", "exec")]
    if re.search(r"\bm0\b", s): out += [("x", "m0")]
    return out


def split_ops(rest):
    ops, depth, cur = [], 0, ""
    for ch in rest:
        if ch == "[": depth += 1
        if ch == "]": depth -= 1
        if ch == "," and depth == 0:
            ops.append(cur.strip()); cur = ""
        else:
            cur += ch
    if cur.strip():
        ops.append(cur.strip())
    return ops


class Ins:
    __slots__ = ("text", "mn", "cls", "rd", "wr", "passes", "srcC", "dpp", "wide_store", "ldsdma", "ab", "nstates")
    def __init__(self, text):
        self.text = text
        t = text.split(";")[0].strip()
        parts = t.split(None, 1)
        mn = self.mn = parts[0]
        rest = parts[1] if len(parts) > 1 else ""
        ops = split_ops(rest)
        self.rd, self.wr = set(), set()
        self.passes = 0; self.srcC = set(); self.ab = set()
        self.dpp = bool(re.search(r"quad_perm|row_sh|row_ro|row_bcast|row_mirror|row_half|wave_sh|wave_ro|row_newbcast", t))
        self.wide_store = False; self.ldsdma = False; self.nstates = 1
        R = lambda lst: set(x for o in lst for x in regs_of(o))
        if mn.startswith("v_mfma"):
            self.cls = "mfma"
            self.passes = 8 if "32x32" in mn else 4
            if "32x32x2_f32" in mn or "32x32x64" in mn: self.passes = 16
            if "16x16x4_f32" in mn: self.passes = 8
            self.wr = R(ops[:1]); self.ab = R(ops[1:3]); self.srcC = R(ops[3:4])
            self.rd = self.ab | self.srcC
        elif mn.startswith("v_"):
            self.cls = "trans" if mn.startswith(TRANS) else "valu"
            if mn.startswith("v_cmpx"):
                self.wr = R(ops[:1]) | {("x", "exec")}; self.rd = R(ops[1:])
            elif mn.startswith("v_permlane") and "swap" in mn:
                self.wr = R(ops[:2]); self.rd = R(ops[:2])
            elif mn.startswith(("v_add_co", "v_sub_co", "v_subrev_co", "v_addc_co", "v_subb_co", "v_mad_u64", "v_div_scale")):
                self.wr = R(ops[:2]); self.rd = R(ops[2:])
            else:
                self.wr = R(ops[:1]); self.rd = R(ops[1:])
                if mn.startswith(("v_fmac", "v_pk_fmac", "v_dot2c", "v_mac", "v_writelane")) or "sdwa" in mn or "dst_unused:UNUSED_PRESERVE" in t:
                    self.rd |= self.wr
                if self.dpp:
                    self.rd |= self.wr
                if mn.startswith("v_cndmask") and len(ops) == 3:
                    self.rd.add(("x", "vcc"))
                if mn.startswith("v_div_fmas"):
                    self.rd.add(("x", "vcc"))
            self.rd.add(("x", "exec"))
        elif mn.startswith(("buffer_", "global_", "flat_", "scratch_")):
            self.cls = "vmem"
            lds = bool(re.search(r"\blds\b", t)) or "load_lds" in mn
            if "load" in mn and not lds:
                self.wr = R(ops[:1]); self.rd = R(ops[1:])
            elif "atomic" in mn and re.search(r"\bsc0\b", t) and mn.startswith("buffer_"):
                self.wr = R(ops[:1]); self.rd = R(ops)
            elif "atomic" in mn and re.search(r"\bsc0\b", t):
                self.wr = R(ops[:1]); self.rd = R(ops[1:])
            else:
                self.rd = R(ops)
                if "store" in mn and ("x4" in mn or "x3" in mn): self.wide_store = True
            if lds:
                self.ldsdma = True; self.rd.add(("x", "m0"))
            self.rd.add(("x", "exec"))
        elif mn.startswith("ds_"):
            self.cls = "ds"
            if mn.startswith(("ds_read", "ds_bpermute", "ds_permute", "ds_swizzle")) or "_rtn" in mn:
                self.wr = R(ops[:1]); self.rd = R(ops[1:])
            else:
                self.rd = R(ops)
            self.rd.add(("x", "exec"))
        elif mn.startswith(("s_load", "s_memtime", "s_memrealtime", "s_buffer_load")):
            self.cls = "smem"
            self.wr = R(ops[:1]); self.rd = R(ops[1:])
        elif mn.startswith("s_"):
            self.cls = "salu"
            if mn == "s_nop":
                self.nstates = int(ops[0], 0) + 1
            elif mn.startswith(("s_cmp", "s_bitcmp", "s_waitcnt", "s_barrier", "s_branch", "s_cbranch", "s_setprio", "s_sleep",
                                "s_endpgm", "s_sethalt", "s_setreg")):
                self.rd = R(ops)
                if mn.startswith("s_cbranch_vcc"): self.rd.add(("x", "vcc"))
                if mn.startswith("s_cbranch_exec"): self.rd.add(("x", "exec"))
            elif "saveexec" in mn:
                self.wr = R(ops[:1]) | {("x", "exec")}; self.rd = R(ops[1:]) | {("x", "exec")}
            else:
                self.wr = R(ops[:1]); self.rd = R(ops[1:])
                if mn.startswith(("s_addk", "s_mulk", "s_cmov")): self.rd |= self.wr
        else:
            raise ValueError("unknown instruction: " + text)


def is_sgprish(r):
    return r[0] == "s" or r == ("x", "vcc")


class Emitter:
    def __init__(self, auto_wait=True):
        self.lines = []
        self.hist = []
        self.vmq = []
        self.lgq = []
        self.n_ins = 0
        self.n_nop = 0
        self.stats = {}
        self.uid = 0

    def raw(self, text):
        self.lines.append(text)
    def comment(self, text):
        self.lines.append("; " + text)
    def label(self, name):
        self.lines.append(name + ":")
    def newlabel(self, base="L"):
        self.uid += 1
        return f"{base}_{self.uid}"

    def _put(self, ins):
        self.lines.append("    " + ins.text)
        self.hist.append(ins)
        if len(self.hist) > 40: self.hist.pop(0)
        self.n_ins += 1
        self.stats[ins.mn] = self.stats.get(ins.mn, 0) + 1

    def nop(self, states):
        while states > 0:
            k = min(states, 16)
            self._put(Ins(f"s_nop {k - 1}")); self.n_nop += 1
            states -= k

    def _wait(self, vm=None, lgkm=None):
        parts = []
        if vm is not None:
            vm = min(vm, 63)
            if vm < len(self.vmq):
                parts.append(f"vmcnt({vm})"); self.vmq = self.vmq[len(self.vmq) - vm:] if vm else []
        if lgkm is not None:
            if any(o["smem"] for o in self.lgq): lgkm = 0
            lgkm = min(lgkm, 15)
            if lgkm < len(self.lgq):
                parts.append(f"lgkmcnt({lgkm})"); self.lgq = self.lgq[len(self.lgq) - lgkm:] if lgkm else []
        if parts:
            self._put(Ins("s_waitcnt " + " ".join(parts)))

    def wait_all(self, vm=True, lgkm=True):
        self._wait(0 if vm else None, 0 if lgkm else None)

    def force_wait(self, text):
        self._put(Ins("s_waitcnt " + text))
        m = re.search(r"vmcnt\((\d+)\)", text)
        if m:
            n = int(m.group(1)); self.vmq = self.vmq[max(0, len(self.vmq) - n):] if n else []
        m = re.search(r"lgkmcnt\((\d+)\)", text)
        if m:
            n = int(m.group(1)); self.lgq = self.lgq[max(0, len(self.lgq) - n):] if n else []

    def _need(self, q, pred):
        last = -1
        for i, o in enumerate(q):
            if pred(o): last = i
        return None if last < 0 else len(q) - 1 - last

    def wait_tag(self, *tags):
        tags = set(tags)
        vm = self._need(self.vmq, lambda o: o["tag"] in tags)
        lg = self._need(self.lgq, lambda o: o["tag"] in tags)
        self._wait(vm, lg)

    def forget(self, *tags):
        self.vmq = [o for o in self.vmq if o["tag"] not in tags]
        self.lgq = [o for o in self.lgq if o["tag"] not in tags]

    def snapshot(self):
        return (list(self.vmq), list(self.lgq))
    def restore(self, snap):
        self.vmq, self.lgq = list(snap[0]), list(snap[1])

    def outstanding(self, tag):
        return any(o["tag"] == tag for o in self.vmq + self.lgq)

    def _hazard(self, I):
        need = 0
        dist = 0
        for P in reversed(self.hist):
            req = 0
            pw = P.wr
            if P.cls == "mfma":
                n = P.passes
                tbl = {2: 0, 4: 1, 8: 2, 16: 3}[n]
                if I.cls == "mfma":
                    if pw & I.ab: req = max(req, (5, 8, 12, 20)[tbl])
                    if pw & I.srcC:
                        if pw == I.srcC and P.passes == I.passes: req = max(req, (2, 0, 0, 0)[tbl])
                        else: req = max(req, (4, 6, 10, 18)[tbl])
                elif I.cls in ("valu", "trans"):
                    if pw & (I.rd | I.wr): req = max(req, (5, 8, 12, 20)[tbl])
                    if P.srcC & I.wr: req = max(req, (1, 3, 7, 15)[tbl])
                elif I.cls in ("vmem", "ds"):
                    if pw & (I.rd | I.wr): req = max(req, (5, 8, 12, 20)[tbl])
            elif P.cls in ("valu", "trans"):
                vw = set(r for r in pw if r[0] in "va")
                sw = set(r for r in pw if is_sgprish(r))
                if I.cls == "mfma":
                    if vw & I.rd: req = max(req, 2)
                    if ("x", "exec") in pw: req = max(req, 4)
                if I.cls in ("valu", "trans"):
                    if P.cls == "trans" and vw & I.rd: req = max(req, 1)
                    if I.dpp and vw & I.rd: req = max(req, 2)
                    if I.dpp and ("x", "exec") in pw: req = max(req, 5)
                    if I.mn.startswith("v_permlane") and vw & I.rd: req = max(req, 2)
                    if I.mn.startswith("v_permlane") and ("x", "exec") in pw: req = max(req, 4)
                    if I.mn.startswith(("v_readlane", "v_readfirstlane")) and vw & I.rd: req = max(req, 1)
                    if I.mn.startswith(("v_readlane", "v_readfirstlane", "v_writelane")) and ("x", "exec") in pw: req = max(req, 4)
                    if sw & I.rd:
                        req = max(req, 4 if I.mn.startswith(("v_readlane", "v_writelane", "v_div_fmas")) else 2)
                    if "op_sel:" in P.text and P.mn.startswith("v_cvt") and vw & (I.rd | I.wr): req = max(req, 1)
                    if "sdwa" in P.mn and vw & (I.rd | I.wr): req = max(req, 1)
                if I.cls == "vmem" and sw & I.rd: req = max(req, 5)
                if I.cls == "ds" and sw & I.rd: req = max(req, 5)
                if I.cls in ("salu", "smem") and sw & I.rd: req = max(req, 4)
                if I.mn.startswith(("s_cbranch_vcc", "s_cbranch_exec")) and (pw & I.rd): req = max(req, 5)
            elif P.cls == "vmem":
                if P.wide_store:
                    data = set(r for r in P.rd if r[0] in "va")
                    if I.cls in ("valu", "trans") and data & I.wr: req = max(req, 2)
                    elif data & I.wr: req = max(req, 1)
            elif P.cls == "salu":
                if ("x", "m0") in pw and I.cls == "vmem" and I.ldsdma: req = max(req, 1)
                if ("x", "exec") in pw and I.dpp: req = max(req, 0)
            if req > dist: need = max(need, req - dist)
            dist += P.nstates
            if dist >= 20: break
        return need

    def __call__(self, text, tag=None):
        for line in text.split("\n"):
            line = line.strip()
            if line: self._one(line, tag)

    def _one(self, text, tag):
        I = Ins(text)
        touch = set(r for r in (I.rd | I.wr) if r[0] in "vas")
        vm = self._need(self.vmq, lambda o: o["dst"] & touch)
        lg = self._need(self.lgq, lambda o: o["dst"] & touch)
        if I.mn == "s_barrier":
            pass
        if vm is not None or lg is not None:
            self._wait(vm, lg)
        if I.cls in ("ds", "smem") and len(self.lgq) >= 15:
            pass
        n = self._hazard(I)
        if n: self.nop(n)
        self._put(I)
        if I.cls == "vmem":
            self.vmq.append(dict(dst=set(r for r in I.wr if r[0] in "vas"), tag=tag))
        elif I.cls == "ds":
            self.lgq.append(dict(dst=set(r for r in I.wr if r[0] in "vas"), tag=tag, smem=False))
        elif I.cls == "smem":
            self.lgq.append(dict(dst=set(r for r in I.wr if r[0] in "vas"), tag=tag, smem=True))

    def text(self):
        return "\n".join(self.lines) + "\n"


class Stream(list):
    def __call__(self, text, tag=None):
        for line in text.split("\n"):
            line = line.strip()
            if line: self.append((line, tag))
    def do(self, fn):
        self.append(fn)


def emit_op(E, op):
    if callable(op): op(E)
    else: E(op[0], op[1])


def emit_stream(E, s):
    for op in s: emit_op(E, op)
```

```python
from asm import *

KA = dict(x=0, lre=8, lim=16, bre=24, bim=32, cre=40, cim=48, logdt=56, dskip=64, q=72, k=80, v=88,
          shk=96, ssk=104, ssd=112, gw=120, out=128, dbg=136, ws=144)
SIZE = dict(x=4 << 20, lre=2048, lim=2048, bre=2 << 20, bim=2 << 20, cre=2 << 20, cim=2 << 20, logdt=2048, dskip=2048,
            k=4 << 20, v=4 << 20, shk=8192, ssk=4 << 20, ssd=2048, gw=2048, out=8 << 20, dbg=256, ws=256 << 20)

WS_H = 0
WS_U = 8 << 20
WS_Y = 12 << 20
WS_C = 16 << 20
WS_G = 20 << 20
WS_S = (20 << 20) + 65536
WS_F = (20 << 20) + (512 << 10)
WS_T = 24 << 20
WS_DUMP = 32 << 20
SENTINEL = 0xFFFFFFFF
KNAME = "gated_mix__ssm_conv_s5__ssm_conv_h3__prompt_kernel"
SRD3 = 0x00020000


class K:
    def __init__(self, name, nv=256, na=0):
        self.name = name
        self.E = Emitter()
        self.v = Alloc("v", 1, nv)
        self.a = Alloc("a", 0, max(na, 1))
        self.s = Alloc("s", 4, 100)
        self.nv, self.na = nv, na
        self.srds = {}
        self.ptrs = {}
    def __call__(self, text, tag=None):
        self.E(text, tag)
    def V(self, n=1, align=None, name=None): return self.v.alloc(n, align, name)
    def S(self, n=1, align=None, name=None): return self.s.alloc(n, align, name)
    def A(self, n=1, align=None, name=None): return self.a.alloc(n, align, name)

    def load_ptrs(self, names):
        for n in names:
            if n not in self.ptrs:
                p = self.S(2, 2); self.ptrs[n] = p
                self(f"s_load_dwordx2 {p}, s[0:1], {KA[n]}")
    def make_srd(self, key, ptr, size, off=0):
        r = self.S(4, 4); p = self.ptrs[ptr]
        if off:
            self(f"s_add_u32 {r[0]}, {p[0]}, {off}")
            self(f"s_addc_u32 {r[1]}, {p[1]}, 0")
        else:
            self(f"s_mov_b32 {r[0]}, {p[0]}")
            self(f"s_mov_b32 {r[1]}, {p[1]}")
        self(f"s_mov_b32 {r[2]}, {size}")
        self(f"s_mov_b32 {r[3]}, {SRD3}")
        self.srds[key] = r
        return r


def kernel_text(k, vgpr_total=None, accum=None):
    nv = k.v.high
    accum = accum or ((nv + 3) // 4 * 4)
    na = k.a.high if k.na else 0
    total = vgpr_total or (accum + na)
    ns = max(k.s.high, 16)
    body = k.E.text()
    return f""".text
.globl {k.name}
.p2align 8
.type {k.name},@function
{k.name}:
{body}
.section .rodata,"a"
.p2align 6
.amdhsa_kernel {k.name}
  .amdhsa_next_free_vgpr {total}
  .amdhsa_next_free_sgpr {ns}
  .amdhsa_accum_offset {accum}
  .amdhsa_group_segment_fixed_size 0
  .amdhsa_kernarg_size 152
  .amdhsa_user_sgpr_count 2
  .amdhsa_user_sgpr_kernarg_segment_ptr 1
  .amdhsa_system_sgpr_workgroup_id_x 1
  .amdhsa_float_denorm_mode_32 3
.end_amdhsa_kernel
"""

HEADER_ARGS = open(__file__.replace("common.py", "header.txt")).read()

def file_text(launches, kernels):
    out = HEADER_ARGS
    if len(launches) == 1 and launches[0][0] == KNAME:
        n, g, b, l = launches[0]
        out += f"; @launch grid=({g},1,1) block=({b},1,1) lds={l}\n"
    else:
        for n, g, b, l in launches:
            out += f"; @launch kernel={n} grid=({g},1,1) block=({b},1,1) lds={l}\n"
    out += '.amdgcn_target "amdgcn-amd-amdhsa--gfx950"\n'
    for t in kernels:
        out += t
    return out


class Stamps:
    def __init__(self, k, enable=True):
        self.k, self.names, self.regs, self.enable = k, [], [], enable
    def __call__(self, name):
        if not self.enable: return
        r = self.k.S(2, 2); self.names.append(name); self.regs.append(r)
        self.k(f"s_memtime {r}")
    def flush(self, slot=0):
        if not self.enable: return
        k = self.k
        k.E.wait_all()
        srd = k.make_srd("stamps", "ws", 1 << 20, WS_T + slot * 65536 * 4)
        t = k.V(2, 2); o = k.V()
        k(f"v_lshrrev_b32 {o}, 6, v0")
        k(f"v_lshlrev_b32 {o}, 8, {o}")
        k(f"s_lshl_b32 s3, s2, 10")
        k(f"v_add_u32 {o}, s3, {o}")
        for i, r in enumerate(self.regs):
            k(f"v_mov_b32 {t[0]}, {r[0]}\nv_mov_b32 {t[1]}, {r[1]}")
            k(f"buffer_store_dwordx2 {t}, {o}, {srd}, 0 offen offset:{8 * i}")
            k("s_nop 1")
        k.E.wait_all()


class Nonce:
    def __init__(self, k, w):
        self.k, self.w = k, w
        self.srd = k.make_srd("dbg", "dbg", 256)
        self.n = k.S(2, 2, "nonce")
        self.v = k.V(2, 2); self.z = k.V()
    def publish(self):
        k = self.k
        lab = k.E.newlabel("Lnonce")
        k(f"s_or_b32 s3, s2, {self.w}")
        k(f"s_cmp_lg_u32 s3, 0")
        k(f"s_cbranch_scc1 {lab}")
        k(f"s_memrealtime {self.n}", "nt")
        k.E.wait_tag("nt")
        k(f"v_mov_b32 {self.v[0]}, {self.n[0]}\nv_mov_b32 {self.v[1]}, {self.n[1]}\nv_mov_b32 {self.z}, 0")
        k(f"buffer_store_dwordx2 {self.v}, {self.z}, {self.srd}, 0 offen sc0 sc1", "npub")
        k("s_nop 1")
        k.E.label(lab)
        k.E.forget("npub")
    def load(self):
        k = self.k
        k(f"v_mov_b32 {self.z}, 0")
        k(f"buffer_load_dwordx2 {self.v}, {self.z}, {self.srd}, 0 offen sc0 sc1", "nld")
    def get(self):
        k = self.k; E = k.E
        ok = E.newlabel("Lnok"); retry = E.newlabel("Lnretry")
        cnt = k.S()
        k(f"s_mov_b32 {cnt}, 0")
        k(f"v_readfirstlane_b32 {self.n[0]}, {self.v[0]}\nv_readfirstlane_b32 {self.n[1]}, {self.v[1]}")
        k(f"s_or_b32 s3, {self.n[0]}, {self.n[1]}")
        k(f"s_cmp_lg_u32 s3, 0")
        k(f"s_cbranch_scc1 {ok}")
        E.label(retry)
        E.raw(f"    buffer_load_dwordx2 {self.v}, {self.z}, {self.srd}, 0 offen sc0 sc1")
        E.raw("    s_waitcnt vmcnt(0)")
        E.raw(f"    v_readfirstlane_b32 {self.n[0]}, {self.v[0]}")
        E.raw(f"    v_readfirstlane_b32 {self.n[1]}, {self.v[1]}")
        E.raw(f"    s_add_u32 {cnt}, {cnt}, 1")
        E.raw(f"    s_nop 3")
        E.raw(f"    s_or_b32 s3, {self.n[0]}, {self.n[1]}")
        E.raw(f"    s_cmp_gt_u32 {cnt}, 100000")
        E.raw(f"    s_cbranch_scc1 {ok}")
        E.raw(f"    s_cmp_eq_u32 s3, 0")
        E.raw(f"    s_cbranch_scc1 {retry}")
        E.label(ok)
        k.s.free(cnt); k.v.free(self.v, self.z)
```

```python
from common import *
from prep import hi_mask


def shell_order():
    out = []
    for s in range(8):
        for o in range(s + 1):
            if s + o > 7: continue
            if o == s: out.append((s, s))
            else: out += [(o, s), (s, o)]
    assert len(out) == 36 and len(set(out)) == 36
    return out


class Conv:
    KSTR = 4160
    KREG = 4 * 4160
    UREG = 4608
    WREG = KREG + UREG

    def __init__(self, k, lane, w, tc, dg, lds_base, sc="sc0 sc1"):
        self.k, self.lane, self.w, self.tc, self.dg, self.LB, self.sc = k, lane, w, tc, dg, lds_base, sc

    def setup(self):
        k, lane, w = self.k, self.lane, self.w
        d = self.d = k.S(name="chan")
        k(f"s_lshl_b32 {d}, {self.dg}, 7")
        k(f"s_lshl_b32 s3, {self.tc}, 2")
        k(f"s_add_u32 {d}, {d}, s3")
        k(f"s_add_u32 {d}, {d}, {w}")
        self.rowoff = k.S(name="rowoff")
        k(f"s_lshl_b32 {self.rowoff}, {d}, 12")
        r = self.srdK = k.S(4, 4); p = k.ptrs["ssk"]
        k(f"s_add_u32 {r[0]}, {p[0]}, {self.rowoff}")
        k(f"s_addc_u32 {r[1]}, {p[1]}, 0")
        k(f"s_mov_b32 {r[2]}, 4096")
        k(f"s_mov_b32 {r[3]}, {SRD3}")
        self.srdU = k.srds.get("u") or k.make_srd("u", "ws", 4 << 20, WS_U)
        self.srdY = k.make_srd("y", "ws", 4 << 20, WS_Y)
        self.srdD = k.make_srd("ssd", "ssd", SIZE["ssd"])
        self.wb = k.S(name="convbase")
        k(f"s_mul_i32 {self.wb}, {w}, {self.WREG}")
        if self.LB: k(f"s_add_u32 {self.wb}, {self.wb}, {self.LB}")
        self.l16 = k.V(name="l16b")
        k(f"v_lshlrev_b32 {self.l16}, 4, {lane}")
        a = k.V(); q = k.V(); t = k.V(); t2 = k.V()
        k(f"v_and_b32 {a}, 15, {lane}")
        k(f"v_lshrrev_b32 {q}, 4, {lane}")
        self.aA = k.V(name="aA"); self.aB = k.V(name="aB"); self.aE = k.V(name="aE")
        k(f"v_add_u32 {t}, 1, {a}")
        k(f"v_and_b32 {t2}, 3, {t}")
        k(f"v_mul_u32_u24 {t2}, {self.KSTR}, {t2}")
        k(f"v_and_b32 {t}, 28, {t}")
        k(f"v_lshl_add_u32 {t2}, {t}, 1, {t2}")
        k(f"v_lshl_add_u32 {t2}, {q}, 4, {t2}")
        k(f"v_add_u32 {self.aA}, {self.wb}, {t2}")
        k(f"s_add_u32 s3, {self.wb}, {self.KREG + 480}")
        k(f"v_lshlrev_b32 {t}, 5, {a}")
        k(f"v_sub_u32 {t}, s3, {t}")
        k(f"v_lshl_add_u32 {self.aB}, {q}, 4, {t}")
        k(f"v_lshlrev_b32 {t2}, 3, {q}")
        k(f"v_sub_u32 {t}, {t}, {t2}")
        k(f"v_add_u32 {self.aE}, 24, {t}")
        self.yo = k.V(name="yo")
        k(f"v_and_b32 {t}, 1, {q}")
        k(f"v_lshlrev_b32 {t}, 9, {t}")
        k(f"v_lshl_add_u32 {t}, {a}, 5, {t}")
        k(f"v_lshrrev_b32 {t2}, 1, {q}")
        k(f"v_lshl_add_u32 {self.yo}, {t2}, 4, {t}")
        k.v.free(a, q, t, t2)
        self.hm = hi_mask(k)
        self.acc = None

    def k_alloc(self):
        k = self.k
        self.kD = [k.V(4, 2) for _ in range(5)]; self.kN = [k.V(2, 2) for _ in range(5)]
        self.kT = [k.V(4, 2) for _ in range(3)]
        self.kh = k.V(2, 1); self.kw = k.V()
        self.vD = k.V(name="ssmD")
        k(f"v_subrev_u32 {self.kh[0]}, 32, {self.l16}")
        k(f"v_min_u32 {self.kh[0]}, 0x7fff0000, {self.kh[0]}")
        k(f"v_subrev_u32 {self.kh[1]}, 16, {self.l16}")
        k(f"v_min_u32 {self.kh[1]}, 0x7fff0000, {self.kh[1]}")
        k(f"v_add_u32 {self.kw}, {self.wb}, {self.l16}")

    def k_loads(self, st):
        k = self.k
        st(f"buffer_load_dwordx4 {self.kD[4]}, {self.kh[0]}, {self.srdK}, 0 offen")
        st(f"buffer_load_dwordx2 {self.kN[4]}, {self.kh[1]}, {self.srdK}, 0 offen")
        for p in range(4):
            st(f"buffer_load_dwordx4 {self.kD[p]}, {self.l16}, {self.srdK}, 0 offen offset:{1024 * p}")
            st(f"buffer_load_dwordx2 {self.kN[p]}, {self.l16}, {self.srdK}, 0 offen offset:{1024 * p + 16}")
        t = self.kT[0][0]
        st(f"s_lshl_b32 s3, {self.d}, 1")
        st(f"v_mov_b32 {self.vD}, s3")
        st(f"buffer_load_ushort {self.vD}, {self.vD}, {self.srdD}, 0 offen")

    def k_build(self, st):
        A, T, B = self.kT
        for p in (4, 0, 1, 2, 3):
            D, N = self.kD[p], self.kN[p]
            off = 0 if p == 4 else 32 + 1024 * p
            dd = [D[0], D[1], D[2], D[3], N[0], N[1]]
            st(f"ds_write_b128 {self.kw}, {D} offset:{off}", "kcw")
            for i in range(4):
                st(f"v_alignbit_b32 {A[i]}, {dd[i + 1]}, {dd[i]}, 16")
            st(f"v_pk_mov_b32 {T[0:2]}, {D[0:2]}, {D[2:4]} op_sel:[1,0]")
            st(f"v_pk_mov_b32 {T[2:4]}, {D[2:4]}, {N[0:2]} op_sel:[1,0]")
            st(f"ds_write_b128 {self.kw}, {A} offset:{off + self.KSTR}", "kcw")
            st(f"v_pk_mov_b32 {B[0:2]}, {A[0:2]}, {A[2:4]} op_sel:[1,0]")
            st(f"v_mov_b32 {B[2]}, {A[3]}")
            st(f"v_alignbit_b32 {B[3]}, {dd[5]}, {dd[4]}, 16")
            st(f"ds_write_b128 {self.kw}, {T} offset:{off + 2 * self.KSTR}", "kcw")
            st(f"ds_write_b128 {self.kw}, {B} offset:{off + 3 * self.KSTR}", "kcw")
        st(f"v_lshlrev_b32 {self.vD}, 16, {self.vD}")

    def k_free(self):
        k = self.k
        k.v.free(*self.kD, *self.kN, *self.kT, self.kh, self.kw)

    def u_dma(self, st, sc=""):
        k = self.k
        z = self.uz = k.V(2, 2); a = self.ua = k.V()
        st(f"s_add_u32 m0, {self.wb}, {self.KREG}")
        for p in range(4):
            st(f"buffer_load_dwordx4 {self.l16}, {self.srdU}, {self.rowoff} offen offset:{1024 * p} lds {sc}", "udma")
        st(f"v_mov_b32 {z[0]}, 0\nv_mov_b32 {z[1]}, 0")
        st(f"v_lshrrev_b32 {a}, 1, {self.l16}")
        st(f"v_add_u32 {a}, {self.wb}, {a}")
        st(f"ds_write_b64 {a}, {z} offset:{self.KREG + 4096}", "kcw")
    def u_free(self):
        self.k.v.free(self.uz, self.ua)

    def groups(self, rhos, bg=None, npool=14, lead=7, per_slot=1):
        k = self.k; E = k.E
        bg = list(bg or [])
        if self.acc is None:
            self.acc = [k.V(4, 4) for _ in range(8)]
            self.started = set()
        order = shell_order()
        slots = [(rho, mu, nu) for rho in rhos for (mu, nu) in order]
        first, last = {}, {}
        for s, (rho, mu, nu) in enumerate(slots):
            for key in (("A", rho, nu), ("B", rho, mu)):
                first.setdefault(key, s); last[key] = s
        pending = sorted(first, key=lambda x: (first[x], x[0]))
        pool = [k.V(4, 4) for _ in range(npool)]
        free = list(pool); where = {}
        def issue(key):
            r = free.pop(0); where[key] = r
            kind, rho, i = key
            if kind == "A":
                n = 8 * i - rho
                off = 448 + 64 * n
                k(f"ds_read_b64 {r[0:2]}, {self.aA} offset:{off}")
                k(f"ds_read_b64 {r[2:4]}, {self.aA} offset:{off + 8}")
            else:
                m = 8 * i + rho
                k(f"ds_read_b128 {r}, {self.aB} offset:{4032 - 64 * m}")
        while pending and first[pending[0]] < lead and free:
            issue(pending.pop(0))
        for s, (rho, mu, nu) in enumerate(slots):
            ct = mu + nu
            a, b = where[("A", rho, nu)], where[("B", rho, mu)]
            cin = f"{self.acc[ct]}" if ct in self.started else "0"
            self.started.add(ct)
            k(f"v_mfma_f32_16x16x32_bf16 {self.acc[ct]}, {a}, {b}, {cin}")
            for key in (("A", rho, nu), ("B", rho, mu)):
                if last[key] == s: free.append(where[key])
            n = 0
            while pending and first[pending[0]] <= s + lead and free and n < 1:
                issue(pending.pop(0)); n += 1
            for _ in range(per_slot if n == 0 else max(per_slot - 1, 0)):
                if bg: emit_op(E, bg.pop(0))
            if s + 1 < len(slots):
                r2, m2, n2 = slots[s + 1]
                for key in (("A", r2, n2), ("B", r2, m2)):
                    while key not in where:
                        assert free, "conv fragment pool too small"
                        issue(pending.pop(0))
        emit_stream(E, bg)
        k.v.free(*pool)

    def epilogue(self, st=None):
        k = self.k; st = st or k
        e = [k.V(2, 2) for _ in range(8)]
        t = k.V(4, 1); Q = [k.V(4, 2) for _ in range(2)]
        so = k.S()
        for ct in range(8):
            st(f"ds_read_b64 {e[ct]}, {self.aE} offset:{3584 - 512 * ct}")
        st(f"s_mov_b32 {so}, {self.rowoff}")
        for ct in range(8):
            q = Q[(ct >> 1) & 1]; a = self.acc[ct]; h = 2 * (ct & 1)
            st(f"v_and_b32 {t[0]}, {self.hm}, {e[ct][1]}")
            st(f"v_lshlrev_b32 {t[1]}, 16, {e[ct][1]}")
            st(f"v_and_b32 {t[2]}, {self.hm}, {e[ct][0]}")
            st(f"v_lshlrev_b32 {t[3]}, 16, {e[ct][0]}")
            for r in range(4):
                st(f"v_fmac_f32 {a[r]}, {self.vD}, {t[r]}")
            st(f"v_cvt_pk_bf16_f32 {q[h]}, {a[0]}, {a[1]}")
            st(f"v_cvt_pk_bf16_f32 {q[h + 1]}, {a[2]}, {a[3]}")
            if ct & 1:
                st(f"v_permlane16_swap_b32 {q[0]}, {q[2]}")
                st(f"v_permlane16_swap_b32 {q[1]}, {q[3]}")
                st(f"buffer_store_dwordx4 {q}, {self.yo}, {self.srdY}, {so} offen offset:{1024 * (ct >> 1)} {self.sc}", "yst")
        self._epi = (e, t, Q, so)
    def epilogue_free(self):
        k = self.k
        e, t, Q, so = self._epi
        k.v.free(*e, t, *Q, *self.acc); k.s.free(so)
```

```python
from common import *

LOG2E = 0x3fb8aa3b
INV2PI = 0x3e22f983


def wave_ids(k):
    lane = k.V(name="lane"); w = k.S(name="wave")
    k(f"v_lshrrev_b32 {lane}, 6, v0")
    k(f"v_readfirstlane_b32 {w}, {lane}")
    k(f"v_and_b32 {lane}, 63, v0")
    return lane, w


def tile_ids(k):
    c = k.S(name="c"); g = k.S(name="g"); t = k.S()
    k(f"s_and_b32 {t}, s2, 7")
    k(f"s_lshr_b32 {c}, {t}, 1")
    k(f"s_lshl_b32 {c}, {c}, 2")
    k(f"s_and_b32 {g}, {t}, 1")
    k(f"s_lshl_b32 {g}, {g}, 3")
    k(f"s_lshr_b32 {t}, s2, 3")
    k(f"s_and_b32 s3, {t}, 3")
    k(f"s_add_u32 {c}, {c}, s3")
    k(f"s_lshr_b32 {t}, {t}, 2")
    k(f"s_add_u32 {g}, {g}, {t}")
    k.s.free(t)
    return c, g


class G1:
    NST = 16
    SLOT = 32768
    def __init__(self, k, lane, w, c, g, stamps=None):
        self.k, self.lane, self.w, self.c, self.g = k, lane, w, c, g
        self.stamp = stamps or (lambda name: None)

    def setup_dma(self):
        k, lane, w, c, g = self.k, self.lane, self.w, self.c, self.g
        self.srdA = k.make_srd("x", "x", SIZE["x"])
        r = k.S(4, 4); self.srdB = r
        pre, pim = k.ptrs["bre"], k.ptrs["bim"]
        k(f"s_and_b32 s3, {w}, 1")
        k(f"s_cmp_eq_u32 s3, 0")
        k(f"s_cselect_b32 {r[0]}, {pre[0]}, {pim[0]}")
        k(f"s_cselect_b32 {r[1]}, {pre[1]}, {pim[1]}")
        k(f"s_mov_b32 {r[2]}, {SIZE['bre']}")
        k(f"s_mov_b32 {r[3]}, {SRD3}")
        self.voffA = k.V(4, 1); self.voffB = k.V(4, 1)
        rsub = k.V(); ch = k.V(); row = k.V(); t0 = k.V(); t1 = k.V()
        k(f"v_lshrrev_b32 {rsub}, 3, {lane}")
        k(f"v_and_b32 {ch}, 7, {lane}")
        sw = k.S()
        for q in range(4):
            k(f"s_lshl_b32 {sw}, {w}, 5")
            k(f"s_add_u32 {sw}, {sw}, {8 * q}")
            k(f"v_add_u32 {row}, {sw}, {rsub}")
            k(f"v_bfe_u32 {t0}, {row}, 1, 3")
            k(f"v_xor_b32 {t0}, {t0}, {ch}")
            k(f"v_lshlrev_b32 {t0}, 4, {t0}")
            tl = self.voffA[q]
            k(f"v_and_b32 {tl}, 64, {row}")
            k(f"v_bfe_u32 {t1}, {row}, 2, 1")
            k(f"v_lshl_add_u32 {tl}, {t1}, 5, {tl}")
            k(f"v_and_b32 {t1}, 1, {row}")
            k(f"v_lshl_add_u32 {tl}, {t1}, 4, {tl}")
            k(f"v_bfe_u32 {t1}, {row}, 5, 1")
            k(f"v_lshl_add_u32 {tl}, {t1}, 3, {tl}")
            k(f"v_bfe_u32 {t1}, {row}, 3, 2")
            k(f"v_lshl_add_u32 {tl}, {t1}, 1, {tl}")
            k(f"v_bfe_u32 {t1}, {row}, 1, 1")
            k(f"v_add_u32 {tl}, {tl}, {t1}")
            k(f"s_lshl_b32 s3, {c}, 7")
            k(f"v_add_u32 {tl}, s3, {tl}")
            k(f"v_lshl_add_u32 {tl}, {tl}, 11, {t0}")
            pb = self.voffB[q]
            k(f"v_bfe_u32 {pb}, {row}, 6, 1")
            k(f"v_lshlrev_b32 {pb}, 5, {pb}")
            k(f"v_and_b32 {t1}, 31, {row}")
            k(f"v_add_u32 {pb}, {pb}, {t1}")
            k(f"s_lshl_b32 s3, {g}, 6")
            k(f"v_add_u32 {pb}, s3, {pb}")
            k(f"v_lshl_add_u32 {pb}, {pb}, 11, {t0}")
        k.v.free(rsub, ch, row, t0, t1); k.s.free(sw)
        self.koff = k.S(name="koff")
        self.m0base = k.S(name="m0base")
        k(f"s_mov_b32 {self.koff}, 0")
        k(f"s_lshl_b32 {self.m0base}, {w}, 12")

    def dma_ops(self, st):
        k = self.k; slot = st % 4; ops = []
        for half, (voff, srd) in enumerate(((self.voffA, self.srdA), (self.voffB, self.srdB))):
            for q in range(4):
                m0 = slot * self.SLOT + half * 16384 + q * 1024
                ops.append([(f"s_add_u32 m0, {self.m0base}, {m0}", None),
                            (f"buffer_load_dwordx4 {voff[q]}, {srd}, {self.koffs[st]} offen lds", f"g1st{st}")])
        return ops

    def setup_frag(self):
        k, lane, w = self.k, self.lane, self.w
        self.adA = [[k.V() for kk in range(4)] for hi in range(2)]
        self.adB = [[k.V() for kk in range(4)] for hi in range(2)]
        row = k.V(); f = k.V(); t = k.V(); sa = k.S(); sb = k.S()
        k(f"v_and_b32 {row}, 31, {lane}")
        k(f"v_bfe_u32 {f}, {row}, 1, 3")
        k(f"v_lshrrev_b32 {t}, 5, {lane}")
        k(f"v_xor_b32 {f}, {f}, {t}")
        k(f"v_lshlrev_b32 {f}, 4, {f}")
        k(f"v_lshl_add_u32 {f}, {row}, 7, {f}")
        k(f"s_lshr_b32 {sa}, {w}, 1")
        k(f"s_lshl_b32 {sa}, {sa}, 13")
        k(f"s_and_b32 {sb}, {w}, 1")
        k(f"s_lshl_b32 {sb}, {sb}, 13")
        k(f"s_add_u32 {sb}, {sb}, 16384")
        for kk in range(4):
            k(f"v_xor_b32 {t}, {32 * kk}, {f}")
            k(f"v_add_u32 {self.adA[0][kk]}, {sa}, {t}")
            k(f"v_add_u32 {self.adB[0][kk]}, {sb}, {t}")
            k(f"v_add_u32 {self.adA[1][kk]}, 0x10000, {self.adA[0][kk]}")
            k(f"v_add_u32 {self.adB[1][kk]}, 0x10000, {self.adB[0][kk]}")
        k.v.free(row, f, t); k.s.free(sa, sb)
        self.fr = [dict(A=[k.V(4, 4), k.V(4, 4)], B=[k.V(4, 4), k.V(4, 4)]) for s in range(2)]
        self.acc = [[k.V(16, 4) for pl in range(2)] for rt in range(2)]

    def frag_reads(self, st, kk):
        slot = st % 4; hi = slot >> 1; off = (slot & 1) * self.SLOT
        fs = self.fr[kk & 1]
        tag = f"fr{st}_{kk}"
        return [(f"ds_read_b128 {fs['A'][0]}, {self.adA[hi][kk]} offset:{off}", tag),
                (f"ds_read_b128 {fs['B'][0]}, {self.adB[hi][kk]} offset:{off}", tag),
                (f"ds_read_b128 {fs['B'][1]}, {self.adB[hi][kk]} offset:{off + 4096}", tag),
                (f"ds_read_b128 {fs['A'][1]}, {self.adA[hi][kk]} offset:{off + 4096}", tag)]

    def mfmas(self, st, kk):
        fs = self.fr[kk & 1]; out = []
        for rt, pl in ((0, 0), (0, 1), (1, 0), (1, 1)):
            cin = "0" if (st == 0 and kk == 0) else f"{self.acc[rt][pl]}"
            out.append(f"v_mfma_f32_32x32x16_bf16 {self.acc[rt][pl]}, {fs['A'][rt]}, {fs['B'][pl]}, {cin}")
        return out

    def prologue_loads(self):
        k = self.k
        self.koffs = {}
        self.kreg = k.S(name="kreg")
        for st in range(self.NST): self.koffs[st] = self.kreg
        for st in range(4):
            k(f"s_mov_b32 {self.kreg}, {128 * st}")
            for grp in self.dma_ops(st):
                for t, tag in grp: k(t, tag)

    def mainloop(self, bg=None):
        k = self.k; E = k.E
        bg = list(bg or [])
        def bgpop(n=1):
            for _ in range(n):
                if bg: emit_op(E, bg.pop(0))
        E.wait_tag("g1st0")
        k("s_barrier")
        for t, tag in self.frag_reads(0, 0): k(t, tag)
        self.stamp("g1_loop_start")
        pend_dma = []
        for st in range(self.NST):
            for kk in range(4):
                mf = self.mfmas(st, kk)
                fill = [[], [], [], []]
                if kk < 3:
                    rd = self.frag_reads(st, kk + 1)
                    fill[0] += rd[0:2]; fill[1] += rd[2:4]
                else:
                    def bar(st=st):
                        E.wait_tag(f"fr{st}_3")
                        if st + 1 < self.NST: E.wait_tag(f"g1st{st + 1}")
                        k("s_barrier")
                    bar()
                    if st + 1 < self.NST:
                        rd = self.frag_reads(st + 1, 0)
                        fill[0] += rd[0:2]; fill[1] += rd[2:4]
                    if st + 4 < self.NST + 0 or True:
                        nxt = st + 4
                        if nxt < self.NST:
                            pend_dma = [("koff", nxt)] + self.dma_ops(nxt)
                pre = [[], [], [], []]
                n = 0
                while pend_dma and n < 2:
                    op = pend_dma.pop(0)
                    if op[0] == "koff":
                        pre[1].append((f"s_mov_b32 {self.kreg}, {128 * op[1]}", None)); continue
                    pre[2 + n].append(op[0]); fill[2 + n].append(op[1]); n += 1
                for i in range(4):
                    for t, tag in pre[i]: k(t, tag)
                    k(mf[i])
                    for t, tag in fill[i]: k(t, tag)
                    nfill = len(fill[i]) + len(pre[(i + 1) % 4])
                    if nfill < 2: bgpop(2 - nfill)
        emit_stream(E, bg)
        self.stamp("g1_loop_end")

    def params_load(self):
        k, lane, w, g = self.k, self.lane, self.w, self.g
        self.ploc = k.V(name="ploc")
        k(f"s_and_b32 s3, {w}, 1")
        k(f"s_lshl_b32 s3, s3, 5")
        k(f"v_and_b32 {self.ploc}, 31, {lane}")
        k(f"v_add_u32 {self.ploc}, s3, {self.ploc}")
        off = k.V()
        k(f"s_lshl_b32 s3, {g}, 6")
        k(f"v_add_u32 {off}, s3, {self.ploc}")
        k(f"v_lshlrev_b32 {off}, 1, {off}")
        self.p_lre, self.p_lim, self.p_ldt = k.V(), k.V(), k.V()
        for dst, nm in ((self.p_lre, "lre"), (self.p_lim, "lim"), (self.p_ldt, "logdt")):
            srd = k.make_srd(nm, nm, 2048)
            k(f"buffer_load_ushort {dst}, {off}, {srd}, 0 offen")
        self._poff = off

    def params_compute(self, st):
        k = self.k
        lre, lim, ldt = self.p_lre, self.p_lim, self.p_ldt
        self.lam = k.V(2, 2, "lam"); self.coef = k.V(2, 2, "coef")
        self.l16 = k.V(2, 2, "l16"); self.l128 = k.V(2, 2, "l128")
        self.MM = k.V(4, 2, "MM")
        t = k.V(6, 2); self._ptmp = t
        lam, coef = self.lam, self.coef
        st(f"v_lshlrev_b32 {lre}, 16, {lre}")
        st(f"v_lshlrev_b32 {lim}, 16, {lim}")
        st(f"v_lshlrev_b32 {ldt}, 16, {ldt}")
        st(f"v_mul_f32 {t[0]}, {LOG2E}, {ldt}")
        st(f"v_exp_f32 {t[0]}, {t[0]}")
        st(f"v_cvt_pk_bf16_f32 {t[0]}, {t[0]}, {t[0]}")
        st(f"v_lshlrev_b32 {t[0]}, 16, {t[0]}")
        st(f"v_mul_f32 {t[1]}, {t[0]}, {lre}")
        st(f"v_mul_f32 {t[2]}, {t[0]}, {lim}")
        st(f"v_mul_f32 {t[1]}, {LOG2E}, {t[1]}")
        st(f"v_exp_f32 {t[1]}, {t[1]}")
        st(f"v_mul_f32 {t[2]}, {INV2PI}, {t[2]}")
        st(f"v_fract_f32 {t[2]}, {t[2]}")
        st(f"v_cos_f32 {t[3]}, {t[2]}")
        st(f"v_sin_f32 {t[4]}, {t[2]}")
        st(f"v_mul_f32 {lam[0]}, {t[1]}, {t[3]}")
        st(f"v_mul_f32 {lam[1]}, {t[1]}, {t[4]}")
        st(f"v_add_f32 {t[0]}, -1.0, {lam[0]}")
        st(f"v_mul_f32 {t[1]}, {lre}, {lre}")
        st(f"v_fmac_f32 {t[1]}, {lim}, {lim}")
        st(f"v_rcp_f32 {t[1]}, {t[1]}")
        st(f"v_add_f32 {t[1]}, {t[1]}, {t[1]}")
        st(f"v_mul_f32 {t[2]}, {t[0]}, {lre}")
        st(f"v_fmac_f32 {t[2]}, {lam[1]}, {lim}")
        st(f"v_mul_f32 {t[3]}, {lam[1]}, {lre}")
        st(f"v_fma_f32 {t[3]}, -{t[0]}, {lim}, {t[3]}")
        st(f"v_mul_f32 {coef[0]}, {t[2]}, {t[1]}")
        st(f"v_mul_f32 {coef[1]}, {t[3]}, {t[1]}")
        def csq(d, a):
            st(f"v_mul_f32 {d[0]}, {a[1]}, {a[1]}")
            st(f"v_fma_f32 {d[0]}, {a[0]}, {a[0]}, -{d[0]}")
            st(f"v_mul_f32 {d[1]}, {a[0]}, {a[1]}")
            st(f"v_add_f32 {d[1]}, {d[1]}, {d[1]}")
        def cmul(d, a, b):
            st(f"v_mul_f32 {d[0]}, {a[1]}, {b[1]}")
            st(f"v_fma_f32 {d[0]}, {a[0]}, {b[0]}, -{d[0]}")
            st(f"v_mul_f32 {d[1]}, {a[0]}, {b[1]}")
            st(f"v_fmac_f32 {d[1]}, {a[1]}, {b[0]}")
        A, B = t[0:2], t[2:4]
        csq(A, lam); csq(B, A); csq(A, B); csq(self.l16, A)
        l32, l64 = t[0:2], t[2:4]
        csq(l32, self.l16); csq(l64, l32); csq(self.l128, l64)
        mh = k.S(2, 2); mw = k.S(2, 2); self.mask_hh, self.mask_wt = mh, mw
        st(f"s_mov_b32 {mh[0]}, 0")
        st(f"s_mov_b32 {mh[1]}, -1")
        st(f"s_lshr_b32 s3, {self.w}, 1")
        st(f"s_cmp_eq_u32 s3, 1")
        st(f"s_cselect_b32 {mw[0]}, -1, 0")
        st(f"s_cselect_b32 {mw[1]}, -1, 0")
        one, zero = "1.0", "0"
        st(f"v_cndmask_b32 {l32[0]}, 1.0, {l32[0]}, {mh}")
        st(f"v_cndmask_b32 {l32[1]}, 0, {l32[1]}, {mh}")
        st(f"v_cndmask_b32 {l64[0]}, 1.0, {l64[0]}, {mw}")
        st(f"v_cndmask_b32 {l64[1]}, 0, {l64[1]}, {mw}")
        MA = t[4:6]
        cmul(MA, l32, l64)
        MB = t[0:2]
        cmul(MB, MA, self.l16)
        M = self.MM
        st(f"v_mov_b32 {M[0]}, {MA[0]}")
        st(f"v_mov_b32 {M[1]}, {MB[0]}")
        st(f"v_mov_b32 {M[2]}, {MA[1]}")
        st(f"v_mov_b32 {M[3]}, {MB[1]}")

    def params_free_tmp(self):
        self.k.v.free(self._ptmp, self.p_lre, self.p_lim, self.p_ldt, self._poff)

    def zpair(self, pl, step):
        rt, m = step >> 3, step & 7
        return self.acc[rt][pl][2 * m:2 * m + 2]

    BC_LO = "op_sel:[0,0,0] op_sel_hi:[1,0,1]"
    BC_HI = "op_sel:[0,1,0] op_sel_hi:[1,1,1]"
    BC_HI_NEG = BC_HI + " neg_lo:[0,1,0] neg_hi:[0,1,0]"

    def cfma(self, st, dr, di, ar, ai, L, zr, zi, t1, t2):
        st(f"v_pk_fma_f32 {t1}, {ai}, {L}, {zr} {self.BC_HI_NEG}")
        st(f"v_pk_fma_f32 {t2}, {ar}, {L}, {zi} {self.BC_HI}")
        st(f"v_pk_fma_f32 {dr}, {ar}, {L}, {t1} {self.BC_LO}")
        st(f"v_pk_fma_f32 {di}, {ai}, {L}, {t2} {self.BC_LO}")

    EBUF = 131072
    def ebuf_zero(self, st):
        k = self.k
        z = k.V(4, 2); a = k.V()
        st(f"v_mov_b32 {z[0]}, 0\nv_mov_b32 {z[1]}, 0\nv_mov_b32 {z[2]}, 0")
        st(f"v_mul_u32_u24 {a}, 12, v0")
        st(f"v_add_u32 {a}, {self.EBUF}, {a}")
        st(f"ds_write_b32 {a}, {z[0]}\nds_write_b32 {a}, {z[0]} offset:4\nds_write_b32 {a}, {z[0]} offset:8", "ebz")
        self._ebz = (z, a)

    def horner(self):
        k = self.k
        self.Er, self.Ei = k.V(2, 2), k.V(2, 2)
        self.t1, self.t2 = k.V(2, 2), k.V(2, 2)
        Er, Ei = self.Er, self.Ei
        for step in range(16):
            zr, zi = self.zpair(0, step), self.zpair(1, step)
            if step == 0:
                continue
            ar, ai = (self.zpair(0, 0), self.zpair(1, 0)) if step == 1 else (Er, Ei)
            self.cfma(k, Er, Ei, ar, ai, self.lam, zr, zi, self.t1, self.t2)
        ad = k.V(name="eaddr"); self.eaddr = ad
        t = k.V()
        k(f"v_lshrrev_b32 {t}, 5, {self.lane}")
        k(f"v_lshlrev_b32 {t}, 10, {t}")
        k(f"v_lshl_add_u32 {ad}, {self.ploc}, 2, {t}")
        k(f"s_lshr_b32 s3, {self.w}, 1")
        k(f"s_lshl_b32 s3, s3, 11")
        k(f"s_add_u32 s3, s3, {self.EBUF}")
        k(f"v_add_u32 {ad}, s3, {ad}")
        k.v.free(t)
        k(f"ds_write2st64_b32 {ad}, {Er[0]}, {Ei[0]} offset0:12 offset1:13", "ew")
        k(f"ds_write2st64_b32 {ad}, {Er[1]}, {Ei[1]} offset0:14 offset1:15", "ew")

    def combine(self):
        k = self.k; ad = self.eaddr
        e = k.V(14, 2)
        for m in range(6):
            k(f"ds_read2st64_b32 {e[2 * m:2 * m + 2]}, {ad} offset0:{2 * m} offset1:{2 * m + 1}")
        L = self.l16
        P = k.V(2, 2); T = k.V(2, 2)
        cur = e[0:2]
        def step(d, a, z):
            k(f"v_fma_f32 {T[0]}, -{L[1]}, {a[1]}, {z[0]}")
            k(f"v_fma_f32 {T[1]}, {L[1]}, {a[0]}, {z[1]}")
            k(f"v_fma_f32 {d[0]}, {L[0]}, {a[0]}, {T[0]}")
            k(f"v_fma_f32 {d[1]}, {L[0]}, {a[1]}, {T[1]}")
        for m in range(1, 6):
            step(e[2 * m:2 * m + 2], cur, e[2 * m:2 * m + 2]); cur = e[2 * m:2 * m + 2]
        PA = cur
        EA = (self.Er[0], self.Ei[0]); EB = (self.Er[1], self.Ei[1])
        PB = P
        step(PB, PA, EA)
        self.Sv = k.V(2, 2, "Sv")
        step(self.Sv, PB, EB)
        self.PP = k.V(4, 2, "PP")
        k(f"v_mov_b32 {self.PP[0]}, {PA[0]}\nv_mov_b32 {self.PP[1]}, {PB[0]}\nv_mov_b32 {self.PP[2]}, {PA[1]}\nv_mov_b32 {self.PP[3]}, {PB[1]}")
        k.v.free(e, P, T)

    def publish_S(self, nonce):
        k = self.k
        self.nonce = nonce
        self.srdS = srd = k.S(4, 4)
        ws = k.ptrs["ws"]
        k(f"s_lshl_b32 s3, {self.g}, 14")
        k(f"s_add_u32 s3, s3, {WS_S}")
        k(f"s_add_u32 {srd[0]}, {ws[0]}, s3")
        k(f"s_addc_u32 {srd[1]}, {ws[1]}, 0")
        k(f"s_mov_b32 {srd[2]}, 16384")
        k(f"s_mov_b32 {srd[3]}, {SRD3}")
        self.soff = off = k.V(name="soff")
        k(f"v_lshlrev_b32 {off}, 4, {self.ploc}")
        so = k.S(); self.s_coff = so
        k(f"s_lshl_b32 {so}, {self.c}, 10")
        lab = k.E.newlabel("Lnopub")
        k(f"s_lshr_b32 s3, {self.w}, 1")
        k(f"s_cmp_eq_u32 s3, 0")
        k(f"s_cbranch_scc1 {lab}")
        Q = k.V(4, 2)
        k(f"v_mov_b32 {Q[0]}, {self.Sv[0]}\nv_mov_b32 {Q[1]}, {self.Sv[1]}")
        k(f"v_mov_b32 {Q[2]}, {nonce[0]}\nv_mov_b32 {Q[3]}, {nonce[1]}")
        sv = k.S(2, 2)
        k(f"s_mov_b64 {sv}, exec")
        k(f"s_mov_b64 exec, {self.mask_hh}")
        k(f"buffer_store_dwordx4 {Q}, {off}, {srd}, {so} offen sc0 sc1", "spub")
        k(f"s_mov_b64 exec, {sv}")
        k("s_nop 1")
        k.s.free(sv); k.v.free(Q, self.Sv)
        k.E.label(lab)
        k.E.forget("spub")

    def scale_z(self, st):
        C = self.coef
        for step in range(16):
            zr, zi = self.zpair(0, step), self.zpair(1, step)
            t1, t2 = self.t1, self.t2
            st(f"v_pk_mul_f32 {t1}, {zi}, {C} op_sel:[0,1] op_sel_hi:[1,1] neg_lo:[0,1] neg_hi:[0,1]")
            st(f"v_pk_mul_f32 {t2}, {zr}, {C} op_sel:[0,1] op_sel_hi:[1,1]")
            st(f"v_pk_fma_f32 {zr}, {zr}, {C}, {t1} {self.BC_LO}")
            st(f"v_pk_fma_f32 {zi}, {zi}, {C}, {t2} {self.BC_LO}")

    def carry_setup(self):
        k = self.k
        base = k.V()
        k(f"s_sub_u32 s3, {self.s_coff}, 1024")
        k(f"v_add_u32 {base}, s3, {self.soff}")
        self.coffs = offs = k.V(15, 1)
        for m in range(15):
            k(f"v_subrev_u32 {offs[m]}, {1024 * m}, {base}")
            k(f"v_min_u32 {offs[m]}, 0x7fff0000, {offs[m]}")
        k.v.free(base)
        self.sv = k.V(60, 2)

    def carry_loads(self, st):
        for m in range(15):
            st(f"buffer_load_dwordx4 {self.sv[4 * m:4 * m + 4]}, {self.coffs[m]}, {self.srdS}, 0 offen sc0 sc1", "sld")

    def carry_check(self):
        k = self.k; sv = self.sv
        cnt = self._ccnt; ms = self._cms
        k(f"v_mov_b32 {cnt}, 0")
        for b in range(0, 15, 5):
            for m in range(b, b + 5):
                k(f"v_cmp_eq_u64 {ms[2 * (m - b):2 * (m - b) + 2]}, {self.nonce}, {sv[4 * m + 2:4 * m + 4]}")
            for m in range(b, b + 5):
                k(f"v_addc_co_u32 {cnt}, vcc, 0, {cnt}, {ms[2 * (m - b):2 * (m - b) + 2]}")
        k(f"v_cmp_ne_u32 vcc, {self.c}, {cnt}")

    def carry(self, first_loads_issued=False):
        k = self.k; E = k.E
        sv = self.sv
        self._ccnt = k.V(); self._cms = k.S(10, 2)
        cnt = k.S()
        k(f"s_mov_b32 {cnt}, 0")
        if not first_loads_issued: self.carry_loads(k)
        self.carry_check()
        done = E.newlabel("Lpolldone"); lab = E.newlabel("Lpoll")
        k(f"s_cbranch_vccz {done}")
        snap = E.snapshot()
        E.label(lab)
        self.carry_loads(k)
        E.wait_all()
        self.carry_check()
        k(f"s_add_u32 {cnt}, {cnt}, 1")
        k(f"s_cmp_gt_u32 {cnt}, 100000")
        k(f"s_cbranch_scc1 {done}")
        k(f"s_cbranch_vccnz {lab}")
        E.label(done)
        E.restore(snap)
        k("s_nop 4")
        L = self.l128
        H = k.V(2, 2); T = k.V(2, 2)
        cur = sv[56:58]
        for m in range(13, -1, -1):
            z = sv[4 * m:4 * m + 2]
            k(f"v_fma_f32 {T[0]}, -{L[1]}, {cur[1]}, {z[0]}")
            k(f"v_fma_f32 {T[1]}, {L[1]}, {cur[0]}, {z[1]}")
            k(f"v_fma_f32 {z[0]}, {L[0]}, {cur[0]}, {T[0]}")
            k(f"v_fma_f32 {z[1]}, {L[0]}, {cur[1]}, {T[1]}")
            cur = z
        k(f"v_mov_b32 {H[0]}, {cur[0]}\nv_mov_b32 {H[1]}, {cur[1]}")
        self.H = H
        k.v.free(sv, self.coffs, T, self._ccnt); k.s.free(cnt, self._cms)

    def final_scan(self):
        k = self.k
        PP, MM, H = self.PP, self.MM, self.H
        Ir, Ii = k.V(2, 2), k.V(2, 2)
        t1, t2 = self.t1, self.t2
        self.cfma(k, Ir, Ii, MM[0:2], MM[2:4], H, PP[0:2], PP[2:4], t1, t2)
        C = self.coef
        k(f"v_pk_mul_f32 {t1}, {Ii}, {C} op_sel:[0,1] op_sel_hi:[1,1] neg_lo:[0,1] neg_hi:[0,1]")
        k(f"v_pk_mul_f32 {t2}, {Ir}, {C} op_sel:[0,1] op_sel_hi:[1,1]")
        k(f"v_pk_fma_f32 {Ir}, {Ir}, {C}, {t1} {self.BC_LO}")
        k(f"v_pk_fma_f32 {Ii}, {Ii}, {C}, {t2} {self.BC_LO}")
        ae, ao = k.V(), k.V(); t = k.V()
        k(f"v_lshrrev_b32 {t}, 5, {self.lane}")
        k(f"v_lshlrev_b32 {t}, 13, {t}")
        k(f"v_lshl_add_u32 {ae}, {self.ploc}, 2, {t}")
        k(f"s_lshr_b32 s3, {self.w}, 1")
        k(f"s_lshl_b32 s3, s3, 14")
        k(f"s_add_u32 s3, s3, {self.STG}")
        k(f"v_add_u32 {ae}, s3, {ae}")
        k(f"v_xor_b32 {ao}, 16, {ae}")
        pk = [k.V(2, 1), k.V(2, 1)]
        ar, ai = Ir, Ii
        for step in range(16):
            zr, zi = self.zpair(0, step), self.zpair(1, step)
            self.cfma(k, zr, zi, ar, ai, self.lam, zr, zi, t1, t2)
            ar, ai = zr, zi
            if step > 0:
                self._cvt_store(step - 1, pk[step & 1], ae, ao)
        self._cvt_store(15, pk[0], ae, ao)
        k.v.free(Ir, Ii, ae, ao, t, *pk)

    def _cvt_store(self, step, pk, ae, ao):
        k = self.k
        zr, zi = self.zpair(0, step), self.zpair(1, step)
        k(f"v_cvt_pk_bf16_f32 {pk[0]}, {zr[0]}, -{zi[0]}")
        k(f"v_cvt_pk_bf16_f32 {pk[1]}, {zr[1]}, -{zi[1]}")
        k(f"ds_write2st64_b32 {ao if step & 1 else ae}, {pk[0]}, {pk[1]} offset0:{step} offset1:{16 + step}", "stg")

    STG = 0
    def store_h(self, sc=""):
        k = self.k
        srd = k.make_srd("h", "ws", 8 << 20, WS_H)
        ra = k.V(); go = k.V(); t = k.V()
        k(f"v_lshrrev_b32 {t}, 3, {self.lane}")
        k(f"v_and_b32 {ra}, 7, {self.lane}")
        k(f"v_lshlrev_b32 {go}, 4, {ra}")
        k(f"v_lshlrev_b32 {ra}, 5, {ra}")
        k(f"v_lshl_add_u32 {ra}, {t}, 8, {ra}")
        k(f"v_lshl_add_u32 {go}, {t}, 12, {go}")
        k(f"v_and_b32 {t}, 1, {t}")
        k(f"v_lshlrev_b32 {t}, 4, {t}")
        ra2 = k.V()
        k(f"v_xor_b32 {ra2}, 16, {t}")
        k(f"v_add_u32 {ra2}, {ra2}, {ra}")
        k(f"v_add_u32 {ra}, {ra}, {t}")
        k(f"s_lshl_b32 s3, {self.w}, 13")
        k(f"s_add_u32 s3, s3, {self.STG}")
        k(f"v_add_u32 {ra}, s3, {ra}")
        k(f"v_add_u32 {ra2}, s3, {ra2}")
        so = k.S()
        k(f"s_lshl_b32 {so}, {self.c}, 19")
        k(f"s_lshl_b32 s3, {self.w}, 17")
        k(f"s_add_u32 {so}, {so}, s3")
        k(f"s_lshl_b32 s3, {self.g}, 7")
        k(f"s_add_u32 {so}, {so}, s3")
        selr, seli = k.S(), k.S()
        k(f"s_mov_b32 {selr}, 0x05040100\ns_mov_b32 {seli}, 0x07060302")
        d = [k.V(8, 4) for _ in range(4)]
        o = [k.V(8, 4) for _ in range(2)]
        for i in range(4):
            k(f"ds_read_b128 {d[i][0:4]}, {ra} offset:{i * 2048}")
            k(f"ds_read_b128 {d[i][4:8]}, {ra2} offset:{i * 2048}")
        for i in range(4):
            oo = o[i & 1]
            for j in range(4):
                k(f"v_perm_b32 {oo[j]}, {d[i][2 * j + 1]}, {d[i][2 * j]}, {selr}")
            for j in range(4):
                k(f"v_perm_b32 {oo[4 + j]}, {d[i][2 * j + 1]}, {d[i][2 * j]}, {seli}")
            if i: k(f"s_add_u32 {so}, {so}, {8 * 4096}")
            k(f"buffer_store_dwordx4 {oo[0:4]}, {go}, {srd}, {so} offen {sc}", "hst")
            k(f"buffer_store_dwordx4 {oo[4:8]}, {go}, {srd}, {so} offen offset:2048 {sc}", "hst")
        k.v.free(ra, ra2, go, t, *d, *o); k.s.free(so, selr, seli)
```

```python
from common import *
from prep import hi_mask


class G2:
    NST = 16
    SLOT = 16384
    NSLOT = 4

    def __init__(self, k, lane, w, tc, dg, ring=0, xb=65536, yb=65536 + 16384, sc_in="", npool=24, resident=()):
        self.k, self.lane, self.w, self.tc, self.dg = k, lane, w, tc, dg
        self.RB, self.XB, self.YB, self.sc_in = ring, xb, yb, sc_in
        self.npool = npool
        self.resident = list(resident)

    def setup(self):
        k, lane, w, tc, dg = self.k, self.lane, self.w, self.tc, self.dg
        self.srdH = k.srds.get("h") or k.make_srd("h", "ws", 8 << 20, WS_H)
        r = self.srdC = k.S(4, 4); p = k.ptrs["ws"]
        k(f"s_lshl_b32 s3, {dg}, 2")
        k(f"s_add_u32 s3, s3, {w}")
        k(f"s_lshl_b32 s3, s3, 17")
        k(f"s_add_u32 s3, s3, {WS_C}")
        k(f"s_add_u32 {r[0]}, {p[0]}, s3")
        k(f"s_addc_u32 {r[1]}, {p[1]}, 0")
        k(f"s_mov_b32 {r[2]}, {128 * 1024}")
        k(f"s_mov_b32 {r[3]}, {SRD3}")
        self.l16 = k.V(name="g2l16")
        k(f"v_lshlrev_b32 {self.l16}, 4, {lane}")
        self.cso = k.S(name="cso")
        self.voffH = k.V(2, 1)
        row = k.V(); ch = k.V(); t = k.V()
        k(f"v_and_b32 {ch}, 7, {lane}")
        for hf in range(2):
            k(f"v_lshrrev_b32 {row}, 3, {lane}")
            k(f"s_lshl_b32 s3, {w}, 4")
            k(f"s_add_u32 s3, s3, {8 * hf}")
            k(f"v_add_u32 {row}, s3, {row}")
            k(f"v_bfe_u32 {t}, {row}, 1, 3")
            k(f"v_xor_b32 {t}, {t}, {ch}")
            k(f"v_lshlrev_b32 {t}, 4, {t}")
            k(f"s_lshl_b32 s3, {tc}, 6")
            k(f"v_add_u32 {row}, s3, {row}")
            k(f"v_lshl_add_u32 {self.voffH[hf]}, {row}, 12, {t}")
        self.hk = k.S(name="hk"); self.m0b = k.S(name="g2m0")
        k(f"s_lshl_b32 {self.m0b}, {w}, 11")
        if self.RB: k(f"s_add_u32 {self.m0b}, {self.m0b}, {self.RB}")
        self.adA = [k.V() for _ in range(4)]
        k(f"v_and_b32 {row}, 31, {lane}")
        k(f"v_bfe_u32 {ch}, {row}, 1, 3")
        k(f"v_lshrrev_b32 {t}, 5, {lane}")
        k(f"v_xor_b32 {ch}, {ch}, {t}")
        k(f"v_lshlrev_b32 {ch}, 4, {ch}")
        k(f"v_lshl_add_u32 {ch}, {row}, 7, {ch}")
        for kq in range(4):
            k(f"v_xor_b32 {self.adA[kq]}, {32 * kq}, {ch}")
            if self.RB: k(f"v_add_u32 {self.adA[kq]}, {self.RB}, {self.adA[kq]}")
        k.v.free(row, ch, t)

    def alloc_main(self):
        k = self.k
        self.fr = [[k.V(4, 4), k.V(4, 4)] for _ in range(2)]
        self.acc = [k.V(16, 4) for _ in range(2)]
        self.pool = [k.V(4, 4) for _ in range(self.npool)]
        self.free = list(self.pool)
        self.where = {}
        self.stream = [kp for kp in range(128) if kp not in self.resident]

    def alloc_resident(self):
        k = self.k
        self.res = {kp: k.A(4, 4) for kp in self.resident}

    def c_load_ops(self, kp, dst):
        return [(f"s_mov_b32 {self.cso}, {(kp >> 2) * 4096}", None),
                (f"buffer_load_dwordx4 {dst}, {self.l16}, {self.srdC}, {self.cso} offen offset:{(kp & 3) * 1024} {self.sc_in}", "cfrag")]

    def resident_loads(self, st):
        last = None
        for kp in self.resident:
            ops = self.c_load_ops(kp, self.res[kp])
            if last is not None and (last >> 2) == (kp >> 2): ops = ops[1:]
            last = kp
            for t, tag in ops: st(t, tag)

    def issue_stream(self):
        if not self.stream or not self.free: return False
        kp = self.stream.pop(0); r = self.free.pop(0); self.where[kp] = r
        for t, tag in self.c_load_ops(kp, r): self.k(t, tag)
        return True

    def dma_ops(self, st):
        slot = st % self.NSLOT; ops = []
        for s in range(2):
            for hf in range(2):
                m0 = slot * self.SLOT + 8192 * s + 1024 * hf - 128 * s
                ops.append([(f"s_add_u32 m0, {self.m0b}, {m0}", None),
                            (f"buffer_load_dwordx4 {self.voffH[hf]}, {self.srdH}, {self.hk} offen offset:{128 * s} lds {self.sc_in}", f"g2st{st}")])
        return ops

    def prologue_h(self, nst=3):
        k = self.k
        for st in range(nst):
            k(f"s_mov_b32 {self.hk}, {256 * st}")
            for grp in self.dma_ops(st):
                for t, tag in grp: k(t, tag)

    def frag_reads(self, st, kk):
        slot = st % self.NSLOT; s, kq = kk >> 2, kk & 3
        off = slot * self.SLOT + 8192 * s
        fs = self.fr[kk & 1]
        return [(f"ds_read_b128 {fs[0]}, {self.adA[kq]} offset:{off}", f"g2fr{st}_{kk}"),
                (f"ds_read_b128 {fs[1]}, {self.adA[kq]} offset:{off + 4096}", f"g2fr{st}_{kk}")]

    def mainloop(self, bg=None, bg_from=0, npre=3, stamp=None):
        k = self.k; E = k.E
        bg = list(bg or [])
        E.wait_tag("g2st0")
        k("s_barrier")
        for t, tag in self.frag_reads(0, 0): k(t, tag)
        if stamp: stamp("g2_loop_start")
        pend = []
        for st in range(self.NST):
            for kk in range(8):
                kp = 8 * st + kk
                b = self.res[kp] if kp in self.resident else self.where[kp]
                fs = self.fr[kk & 1]
                pre = [[], []]; fill = [[], []]
                if kk < 7:
                    rd = self.frag_reads(st, kk + 1)
                else:
                    E.wait_tag(f"g2fr{st}_7")
                    if st + 1 < self.NST: E.wait_tag(f"g2st{st + 1}")
                    k("s_barrier")
                    rd = self.frag_reads(st + 1, 0) if st + 1 < self.NST else []
                    nxt = st + self.NSLOT
                    if st == 0 and npre < self.NSLOT: pass
                    if nxt < self.NST: pend += [("hk", nxt)] + self.dma_ops(nxt)
                if st == 0 and kk == 0 and npre < self.NSLOT:
                    for s2 in range(npre, self.NSLOT): pend += [("hk", s2)] + self.dma_ops(s2)
                fill[0] += rd
                if pend:
                    op = pend.pop(0)
                    if op[0] == "hk":
                        pre[1].append((f"s_mov_b32 {self.hk}, {256 * op[1]}", None)); op = pend.pop(0)
                    pre[1].append(op[0]); fill[1].append(op[1])
                for rt in range(2):
                    for t, tag in pre[rt]: k(t, tag)
                    cin = "0" if kp == 0 else f"{self.acc[rt]}"
                    k(f"v_mfma_f32_32x32x16_bf16 {self.acc[rt]}, {fs[rt]}, {b}, {cin}")
                    if rt == 1 and kp not in self.resident:
                        self.free.append(b)
                    for t, tag in fill[rt]: k(t, tag)
                    if rt == 1: self.issue_stream()
                    if st >= bg_from:
                        n = 3 - len(fill[rt]) - len(pre[rt])
                        for _ in range(max(n, 0)):
                            if bg: emit_op(E, bg.pop(0))
        emit_stream(E, bg)
        if stamp: stamp("g2_loop_end")

    def epi_setup(self):
        k, lane, w, tc, dg = self.k, self.lane, self.w, self.tc, self.dg
        self.srdX = k.srds.get("x") or k.make_srd("x", "x", SIZE["x"])
        self.srdY = k.srds.get("y") or k.make_srd("y", "ws", 4 << 20, WS_Y)
        self.srdG = k.srds.get("g") or k.make_srd("g", "ws", 16384, WS_G)
        self.srdDk = k.make_srd("dskip", "dskip", SIZE["dskip"])
        self.srdO = k.make_srd("out", "out", SIZE["out"])
        self.hm = hi_mask(k)
        t = k.V(); u = k.V(); c = k.V()
        self.xo = k.V(); self.xs = k.S()
        k(f"v_lshrrev_b32 {t}, 4, {lane}")
        k(f"v_and_b32 {u}, 15, {lane}")
        k(f"v_lshlrev_b32 {c}, 2, {t}")
        k(f"v_xor_b32 {u}, {u}, {c}")
        k(f"v_lshlrev_b32 {u}, 4, {u}")
        k(f"v_lshl_add_u32 {self.xo}, {t}, 11, {u}")
        k(f"s_lshl_b32 {self.xs}, {tc}, 17")
        k(f"s_lshl_b32 s3, {w}, 15")
        k(f"s_add_u32 {self.xs}, {self.xs}, s3")
        k(f"s_lshl_b32 s3, {dg}, 8")
        k(f"s_add_u32 {self.xs}, {self.xs}, s3")
        self.yo = k.V(2, 1); self.ys = k.S()
        for par in range(2):
            k(f"v_lshrrev_b32 {t}, 4, {lane}")
            if par: k(f"v_add_u32 {t}, 4, {t}")
            k(f"v_and_b32 {u}, 7, {lane}")
            k(f"v_xor_b32 {u}, {u}, {t}")
            k(f"v_lshlrev_b32 {u}, 4, {u}")
            k(f"v_lshrrev_b32 {t}, 3, {lane}")
            k(f"v_lshl_add_u32 {self.yo[par]}, {t}, 12, {u}")
        k(f"s_lshl_b32 {self.ys}, {dg}, 19")
        k(f"s_lshl_b32 s3, {w}, 17")
        k(f"s_add_u32 {self.ys}, {self.ys}, s3")
        k(f"s_lshl_b32 s3, {tc}, 7")
        k(f"s_add_u32 {self.ys}, {self.ys}, s3")
        self.xa = k.V()
        r = k.V()
        k(f"v_bfe_u32 {r}, {lane}, 2, 2")
        k(f"v_bfe_u32 {t}, {lane}, 4, 1")
        k(f"v_lshlrev_b32 {t}, 1, {t}")
        k(f"v_bfe_u32 {u}, {lane}, 1, 1")
        k(f"v_add_u32 {t}, {t}, {u}")
        k(f"s_lshl_b32 s3, {w}, 2")
        k(f"v_add_u32 {t}, s3, {t}")
        k(f"v_lshlrev_b32 {u}, 2, {r}")
        k(f"v_xor_b32 {t}, {t}, {u}")
        k(f"v_lshlrev_b32 {t}, 4, {t}")
        k(f"v_and_b32 {u}, 1, {lane}")
        k(f"v_lshl_add_u32 {t}, {u}, 3, {t}")
        k(f"v_lshrrev_b32 {u}, 5, {lane}")
        k(f"v_lshl_add_u32 {r}, {u}, 2, {r}")
        k(f"v_lshl_add_u32 {t}, {r}, 8, {t}")
        k(f"v_add_u32 {self.xa}, {self.XB}, {t}")
        self.ya = k.V()
        k(f"v_and_b32 {t}, 31, {lane}")
        k(f"v_bfe_u32 {c}, {t}, 1, 3")
        k(f"v_lshlrev_b32 {c}, 4, {c}")
        k(f"v_lshl_add_u32 {c}, {t}, 7, {c}")
        k(f"v_lshrrev_b32 {u}, 5, {lane}")
        k(f"v_lshl_add_u32 {c}, {u}, 3, {c}")
        k(f"s_lshl_b32 s3, {w}, 12")
        k(f"s_add_u32 s3, s3, {self.YB}")
        k(f"v_add_u32 {self.ya}, s3, {c}")
        self.go = k.V()
        k(f"v_lshlrev_b32 {u}, 4, {u}")
        k(f"s_lshl_b32 s3, {tc}, 8")
        k(f"v_add_u32 {self.go}, s3, {u}")
        self.dko = k.V(); self.oo = k.V(); self.os = k.S()
        k(f"v_and_b32 {t}, 31, {lane}")
        k(f"s_lshl_b32 s3, {dg}, 7")
        k(f"v_add_u32 {t}, s3, {t}")
        k(f"s_lshl_b32 s3, {w}, 5")
        k(f"v_add_u32 {t}, s3, {t}")
        k(f"v_lshlrev_b32 {self.dko}, 1, {t}")
        k(f"v_lshrrev_b32 {u}, 5, {lane}")
        k(f"v_lshlrev_b32 {u}, 14, {u}")
        k(f"v_lshl_add_u32 {self.oo}, {t}, 2, {u}")
        k(f"s_lshl_b32 {self.os}, {tc}, 18")
        k.v.free(t, u, c, r)
        self.m0x = k.S()

    def epi_x_dma(self, st):
        k = self.k
        st(f"s_lshl_b32 {self.m0x}, {self.w}, 12")
        for i in range(4):
            st(f"s_add_u32 m0, {self.m0x}, {self.XB + 1024 * i}")
            st(f"buffer_load_dwordx4 {self.xo}, {self.srdX}, {self.xs} offen lds", "xdma")
            if i < 3: st(f"s_add_u32 {self.xs}, {self.xs}, {4 * 2048}")
    def epi_y_dma(self, st):
        st(f"s_lshl_b32 {self.m0x}, {self.w}, 12")
        for i in range(4):
            st(f"s_add_u32 m0, {self.m0x}, {self.YB + 1024 * i}")
            st(f"buffer_load_dwordx4 {self.yo[i & 1]}, {self.srdY}, {self.ys} offen lds {self.sc_in}", "ydma")
            if i < 3: st(f"s_add_u32 {self.ys}, {self.ys}, {8 * 4096}")

    def epi_alloc(self):
        k = self.k
        self.G = [k.V(4, 2) for _ in range(8)]
        self.O = [k.V(4, 2) for _ in range(8)]
        self.dk = k.V()
        self.ex = [k.V(2, 2) for _ in range(2)]; self.ey = [k.V(2, 2) for _ in range(2)]
        self.et = k.V(8, 1); self.eya = k.V()

    def epi_small_loads(self, st):
        st(f"buffer_load_ushort {self.dk}, {self.dko}, {self.srdDk}, 0 offen")
        for i in range(8):
            off = (32 * (i >> 2) + 8 * (i & 3)) * 4
            st(f"buffer_load_dwordx4 {self.G[i]}, {self.go}, {self.srdG}, 0 offen offset:{off} {self.sc_in}")
            st(f"s_nop 0")
        st(f"v_add_u32 {self.eya}, 8192, {self.go}")
        for i in range(8):
            off = (32 * (i >> 2) + 8 * (i & 3)) * 4
            st(f"buffer_load_dwordx4 {self.O[i]}, {self.eya}, {self.srdG}, 0 offen offset:{off} {self.sc_in}")

    def epi_pre(self, st):
        t = self.et
        st(f"v_lshlrev_b32 {self.dk}, 16, {self.dk}")
        for i in range(8):
            rt, blk = i >> 2, i & 3
            ex, ey = self.ex[i & 1], self.ey[i & 1]
            st(f"ds_read_b64_tr_b16 {ex}, {self.xa} offset:{(32 * rt + 8 * blk) * 256}")
            st(f"v_xor_b32 {self.eya}, {16 * i}, {self.ya}")
            st(f"ds_read_b64 {ey}, {self.eya}")
            G, O = self.G[i], self.O[i]
            for r in range(4):
                sh = (lambda d, s: f"v_and_b32 {d}, {self.hm}, {s}") if r & 1 else (lambda d, s: f"v_lshlrev_b32 {d}, 16, {s}")
                st(sh(t[r], ey[r >> 1]))
                st(sh(t[4 + r], ex[r >> 1]))
            for r in range(4): st(f"v_mul_f32 {O[r]}, {O[r]}, {t[r]}")
            for r in range(4): st(f"v_fmac_f32 {O[r]}, {G[r]}, {self.dk}")
            for r in range(4): st(f"v_mul_f32 {O[r]}, {O[r]}, {t[4 + r]}")

    def epi_final(self):
        k = self.k
        for i in range(8):
            rt, blk = i >> 2, i & 3
            for r in range(4):
                a = self.acc[rt][4 * blk + r]
                k(f"v_fma_f32 {a}, {self.G[i][r]}, {a}, {self.O[i][r]}")
        for i in range(8):
            rt, blk = i >> 2, i & 3
            for r in range(4):
                a = self.acc[rt][4 * blk + r]
                row = 32 * rt + 8 * blk + r
                k(f"s_add_u32 s3, {self.os}, {row * 4096}")
                k(f"buffer_store_dword {a}, {self.oo}, {self.srdO}, s3 offen", "ost")
```

```python
from common import *

LOG2E = 0x3fb8aa3b


def tile2_ids(k):
    tc = k.S(name="tc"); dg = k.S(name="dg"); t = k.S()
    k(f"s_and_b32 {t}, s2, 7")
    k(f"s_lshr_b32 {tc}, {t}, 1")
    k(f"s_lshl_b32 {tc}, {tc}, 3")
    k(f"s_and_b32 {dg}, {t}, 1")
    k(f"s_lshl_b32 {dg}, {dg}, 2")
    k(f"s_lshr_b32 {t}, s2, 3")
    k(f"s_and_b32 s3, {t}, 7")
    k(f"s_add_u32 {tc}, {tc}, s3")
    k(f"s_lshr_b32 {t}, {t}, 3")
    k(f"s_add_u32 {dg}, {dg}, {t}")
    k.s.free(t)
    return tc, dg


def hi_mask(k):
    if not hasattr(k, "himask"):
        k.himask = k.S(name="himask")
        k(f"s_mov_b32 {k.himask}, 0xffff0000")
    return k.himask


class PrepKV:
    def __init__(self, k, lane, w, c, g, lds_base, sc="sc0 sc1"):
        self.k, self.lane, self.w, self.c, self.g, self.PB, self.sc = k, lane, w, c, g, lds_base, sc

    def setup(self):
        k, lane, w, c, g = self.k, self.lane, self.w, self.c, self.g
        self.srdK = k.make_srd("k", "k", SIZE["k"])
        self.srdV = k.make_srd("v", "v", SIZE["v"])
        self.srdW = k.make_srd("shk", "shk", SIZE["shk"])
        self.srdU = k.make_srd("u", "ws", 4 << 20, WS_U)
        self.hm = hi_mask(k)
        dc = k.V(); tg = k.V(); t = k.V()
        self.vk = k.V(); self.vh = k.V(3, 1); self.vw = k.V()
        k(f"v_and_b32 {dc}, 7, {lane}")
        k(f"v_lshrrev_b32 {tg}, 3, v0")
        k(f"s_lshl_b32 s3, {g}, 7")
        k(f"v_lshl_add_u32 {t}, {dc}, 4, s3")
        k(f"s_lshl_b32 s3, {c}, 18")
        k(f"v_lshl_add_u32 {self.vk}, {tg}, 13, {t}")
        k(f"v_add_u32 {self.vk}, s3, {self.vk}")
        for i in range(3):
            k(f"v_subrev_u32 {self.vh[i]}, {2048 * (3 - i)}, {self.vk}")
            k(f"v_min_u32 {self.vh[i]}, 0x7fff0000, {self.vh[i]}")
        k(f"v_lshlrev_b32 {self.vw}, 2, {t}")
        self.s4096 = k.S()
        k(f"s_mov_b32 {self.s4096}, 4096")
        self.wa = k.V()
        k(f"v_sub_u32 {tg}, 31, {tg}")
        k(f"v_lshlrev_b32 {t}, 1, {dc}")
        k(f"v_xor_b32 {tg}, {tg}, {t}")
        k(f"v_lshlrev_b32 {tg}, 3, {tg}")
        k(f"v_lshl_add_u32 {self.wa}, {dc}, 11, {tg}")
        k(f"v_add_u32 {self.wa}, {self.PB}, {self.wa}")
        self.ra = k.V(2, 1); self.go = k.V()
        v = k.V()
        k(f"v_and_b32 {v}, 15, {lane}")
        k(f"v_lshrrev_b32 {t}, 4, {lane}")
        k(f"s_lshl_b32 s3, {w}, 1")
        for hi in range(2):
            k(f"v_xor_b32 {tg}, s3, {v}")
            if hi: k(f"v_xor_b32 {tg}, 1, {tg}")
            k(f"v_lshlrev_b32 {tg}, 4, {tg}")
            k(f"v_lshl_add_u32 {self.ra[hi]}, {t}, 8, {tg}")
        k(f"s_lshl_b32 s3, {w}, 12")
        k(f"s_add_u32 s3, s3, {self.PB}")
        k(f"v_add_u32 {self.ra[0]}, s3, {self.ra[0]}")
        k(f"s_add_u32 s3, s3, 2048")
        k(f"v_add_u32 {self.ra[1]}, s3, {self.ra[1]}")
        k(f"v_lshlrev_b32 {v}, 4, {v}")
        k(f"v_lshl_add_u32 {self.go}, {t}, 12, {v}")
        self.so = k.S()
        k(f"s_lshl_b32 {self.so}, {g}, 18")
        k(f"s_lshl_b32 s3, {w}, 16")
        k(f"s_add_u32 {self.so}, {self.so}, s3")
        k(f"s_add_u32 {self.so}, {self.so}, 3840")
        k(f"s_lshl_b32 s3, {c}, 8")
        k(f"s_sub_u32 {self.so}, {self.so}, s3")
        k.v.free(dc, tg, t, v)
        self.kr = [k.V(4, 2) for _ in range(7)]
        self.vr = [k.V(4, 2) for _ in range(4)]
        self.wr = [k.V(4, 2) for _ in range(4)]
        self.tmp = [dict(w=k.V(4, 1), kk=k.V(7, 1), u=k.V(4, 1), t=k.V(), p=k.V(2, 2)) for _ in range(1)]

    def loads(self, st):
        for j in range(4):
            st(f"buffer_load_dwordx4 {self.wr[j]}, {self.vw}, {self.srdW}, 0 offen offset:{16 * j}")
        for i in range(7):
            if i < 3: st(f"buffer_load_dwordx4 {self.kr[i]}, {self.vh[i]}, {self.srdK}, 0 offen")
            else:
                r = i - 3
                so = "0" if r < 2 else self.s4096
                st(f"buffer_load_dwordx4 {self.kr[i]}, {self.vk}, {self.srdK}, {so} offen offset:{2048 * (r & 1)}")
        for r in range(4):
            so = "0" if r < 2 else self.s4096
            st(f"buffer_load_dwordx4 {self.vr[r]}, {self.vk}, {self.srdV}, {so} offen offset:{2048 * (r & 1)}")

    def unpack(self, st, dst, src, hi):
        if hi: st(f"v_and_b32 {dst}, {self.hm}, {src}")
        else: st(f"v_lshlrev_b32 {dst}, 16, {src}")

    def compute(self, st):
        T = self.tmp[0]
        W, KK, U, t, P = T["w"], T["kk"], T["u"], T["t"], T["p"]
        for e in range(8):
            d0 = self.wr[(2 * e) >> 2][(2 * e) & 3]; d1 = self.wr[(2 * e + 1) >> 2][(2 * e + 1) & 3]
            self.unpack(st, W[0], d0, 0); self.unpack(st, W[1], d0, 1)
            self.unpack(st, W[2], d1, 0); self.unpack(st, W[3], d1, 1)
            for i in range(7):
                self.unpack(st, KK[i], self.kr[i][e >> 1], e & 1)
            for r in range(4):
                st(f"v_mul_f32 {U[r]}, {W[3]}, {KK[r]}")
            for j in (2, 1, 0):
                for r in range(4):
                    st(f"v_fmac_f32 {U[r]}, {W[j]}, {KK[r + 3 - j]}")
            for r in range(4):
                self.unpack(st, KK[r], self.vr[r][e >> 1], e & 1)
            for r in range(4):
                st(f"v_mul_f32 {U[r]}, {U[r]}, {KK[r]}")
            st(f"v_cvt_pk_bf16_f32 {P[0]}, {U[3]}, {U[2]}")
            st(f"v_cvt_pk_bf16_f32 {P[1]}, {U[1]}, {U[0]}")
            st(f"ds_write_b64 {self.wa}, {P} offset:{256 * e}", "kvw")

    def store(self, st):
        d = self.kr[:4]
        for i in range(4):
            st(f"ds_read_b128 {d[i]}, {self.ra[i >> 1]} offset:{1024 * (i & 1)}")
        for i in range(4):
            if i: st(f"s_add_u32 {self.so}, {self.so}, {4 * 4096}")
            st(f"buffer_store_dwordx4 {d[i]}, {self.go}, {self.srdU}, {self.so} offen {self.sc}", "ust")

    def free(self):
        k = self.k
        T = self.tmp[0]
        k.v.free(self.vk, self.vh, self.vw, self.wa, self.ra, self.go, *self.kr, *self.vr, *self.wr,
                 T["w"], T["kk"], T["u"], T["t"], T["p"])
        k.s.free(self.s4096, self.so)


class PrepC:
    def __init__(self, k, lane, w, tc, dg, sc="sc0 sc1"):
        self.k, self.lane, self.w, self.tc, self.dg, self.sc = k, lane, w, tc, dg, sc
    def setup(self):
        k, lane, w, tc, dg = self.k, self.lane, self.w, self.tc, self.dg
        r = k.S(4, 4); self.srd = r
        pre, pim = k.ptrs["cre"], k.ptrs["cim"]
        k(f"s_cmp_lt_u32 {tc}, 16")
        k(f"s_cselect_b32 {r[0]}, {pre[0]}, {pim[0]}")
        k(f"s_cselect_b32 {r[1]}, {pre[1]}, {pim[1]}")
        k(f"s_mov_b32 {r[2]}, {SIZE['cre']}")
        k(f"s_mov_b32 {r[3]}, {SRD3}")
        self.srdD = k.make_srd("cf", "ws", 4 << 20, WS_C)
        self.src = k.V(); self.dst = k.V(); t = k.V(); ch = k.V()
        k(f"v_lshrrev_b32 {t}, 3, {lane}")
        k(f"v_and_b32 {ch}, 7, {lane}")
        k(f"v_lshlrev_b32 {self.src}, 4, {ch}")
        k(f"v_lshl_add_u32 {self.src}, {t}, 11, {self.src}")
        k(f"v_lshlrev_b32 {self.dst}, 4, {t}")
        k(f"v_lshl_add_u32 {self.dst}, {ch}, 9, {self.dst}")
        k.v.free(t, ch)
        self.ss = k.S(); self.sd = k.S()
        k(f"s_lshl_b32 {self.ss}, {dg}, 18")
        k(f"s_lshl_b32 s3, {w}, 16")
        k(f"s_add_u32 {self.ss}, {self.ss}, s3")
        k(f"s_and_b32 s3, {tc}, 15")
        k(f"s_lshl_b32 s3, s3, 7")
        k(f"s_add_u32 {self.ss}, {self.ss}, s3")
        k(f"s_lshl_b32 {self.sd}, {dg}, 19")
        k(f"s_lshl_b32 s3, {w}, 17")
        k(f"s_add_u32 {self.sd}, {self.sd}, s3")
        k(f"s_lshl_b32 s3, {tc}, 12")
        k(f"s_add_u32 {self.sd}, {self.sd}, s3")
        self.d = [k.V(4, 2) for _ in range(4)]
    def loads(self, st):
        for i in range(4):
            if i: st(f"s_add_u32 {self.ss}, {self.ss}, {8 * 2048}")
            st(f"buffer_load_dwordx4 {self.d[i]}, {self.src}, {self.srd}, {self.ss} offen")
    def stores(self, st):
        for i in range(4):
            st(f"buffer_store_dwordx4 {self.d[i]}, {self.dst}, {self.srdD}, {self.sd} offen offset:{128 * i} {self.sc}", "cst")
    def free(self):
        k = self.k
        k.v.free(self.src, self.dst, *self.d); k.s.free(self.ss, self.sd, self.srd)


class PrepGate:
    def __init__(self, k, lane, w, c, g, sc="sc0 sc1"):
        self.k, self.lane, self.w, self.c, self.g, self.sc = k, lane, w, c, g, sc
    def setup(self):
        k, lane, w, c, g = self.k, self.lane, self.w, self.c, self.g
        self.srdX = k.srds.get("x") or k.make_srd("x", "x", SIZE["x"])
        self.srdW = k.make_srd("gw", "gw", SIZE["gw"])
        self.srdG = k.make_srd("g", "ws", 16384, WS_G)
        self.hm = hi_mask(k)
        self.off = k.V(); self.st_ = k.S(); self.go = k.V()
        k(f"v_lshlrev_b32 {self.off}, 4, {lane}")
        k(f"s_lshl_b32 {self.st_}, {c}, 7")
        k(f"s_lshl_b32 s3, {g}, 3")
        k(f"s_add_u32 {self.st_}, {self.st_}, s3")
        k(f"s_lshl_b32 s3, {w}, 1")
        k(f"s_add_u32 {self.st_}, {self.st_}, s3")
        k(f"s_lshl_b32 s3, {self.st_}, 2")
        k(f"v_mov_b32 {self.go}, s3")
        k(f"s_lshl_b32 {self.st_}, {self.st_}, 11")
        self.x = [k.V(4, 2) for _ in range(4)]; self.wv = [k.V(4, 2) for _ in range(2)]
        self.acc = k.V(2, 2); self.t = k.V(4, 1); self.om = k.V(2, 2)
        self.sv = k.S(2, 2); self.s8k = k.S()
        k(f"s_mov_b32 {self.s8k}, 8192")
    def loads(self, st):
        for h in range(2):
            st(f"buffer_load_dwordx4 {self.wv[h]}, {self.off}, {self.srdW}, 0 offen offset:{1024 * h}")
        for r in range(2):
            for h in range(2):
                st(f"buffer_load_dwordx4 {self.x[2 * r + h]}, {self.off}, {self.srdX}, {self.st_} offen offset:{2048 * r + 1024 * h}")
    def compute(self, st):
        t, acc, hm = self.t, self.acc, self.hm
        first = True
        for h in range(2):
            for j in range(4):
                st(f"v_lshlrev_b32 {t[0]}, 16, {self.wv[h][j]}")
                st(f"v_and_b32 {t[1]}, {hm}, {self.wv[h][j]}")
                for r in range(2):
                    st(f"v_lshlrev_b32 {t[2]}, 16, {self.x[2 * r + h][j]}")
                    st(f"v_and_b32 {t[3]}, {hm}, {self.x[2 * r + h][j]}")
                    if first: st(f"v_mul_f32 {acc[r]}, {t[0]}, {t[2]}")
                    else: st(f"v_fmac_f32 {acc[r]}, {t[0]}, {t[2]}")
                    st(f"v_fmac_f32 {acc[r]}, {t[1]}, {t[3]}")
                first = False
        for ctl in ("row_shr:1", "row_shr:2", "row_shr:4", "row_shr:8"):
            for r in range(2):
                st(f"v_add_f32_dpp {acc[r]}, {acc[r]}, {acc[r]} {ctl} row_mask:0xf bank_mask:0xf bound_ctrl:0")
        for ctl in ("row_bcast:15 row_mask:0xa", "row_bcast:31 row_mask:0xc"):
            for r in range(2):
                st(f"v_add_f32_dpp {acc[r]}, {acc[r]}, {acc[r]} {ctl} bank_mask:0xf")
        st(f"v_cvt_pk_bf16_f32 {t[0]}, {acc[0]}, {acc[1]}")
        st(f"v_lshlrev_b32 {acc[0]}, 16, {t[0]}")
        st(f"v_and_b32 {acc[1]}, {hm}, {t[0]}")
        for r in range(2): st(f"v_mul_f32 {acc[r]}, 0xbfb8aa3b, {acc[r]}")
        for r in range(2): st(f"v_exp_f32 {acc[r]}, {acc[r]}")
        for r in range(2): st(f"v_add_f32 {acc[r]}, 1.0, {acc[r]}")
        for r in range(2): st(f"v_rcp_f32 {acc[r]}, {acc[r]}")
        st(f"v_cvt_pk_bf16_f32 {t[0]}, {acc[0]}, {acc[1]}")
        st(f"v_lshlrev_b32 {acc[0]}, 16, {t[0]}")
        st(f"v_and_b32 {acc[1]}, {hm}, {t[0]}")
        om = self.om
        for r in range(2): st(f"v_sub_f32 {om[r]}, 1.0, {acc[r]}")
        st(f"v_cvt_pk_bf16_f32 {t[0]}, {om[0]}, {om[1]}")
        st(f"v_lshlrev_b32 {om[0]}, 16, {t[0]}")
        st(f"v_and_b32 {om[1]}, {hm}, {t[0]}")
    def store(self, st):
        def f(E):
            sv = self.sv
            E(f"s_mov_b64 {sv}, exec")
            E(f"s_mov_b32 exec_lo, 0")
            E(f"s_mov_b32 exec_hi, 0x80000000")
            E(f"buffer_store_dwordx2 {self.acc}, {self.go}, {self.srdG}, 0 offen {self.sc}", "gst")
            E(f"buffer_store_dwordx2 {self.om}, {self.go}, {self.srdG}, {self.s8k} offen {self.sc}", "gst")
            E(f"s_mov_b64 exec, {sv}")
        if hasattr(st, "do"): st.do(f)
        else: f(st)
    def free(self):
        k = self.k
        k.v.free(self.off, self.go, *self.x, *self.wv, self.acc, self.t, self.om); k.s.free(self.st_, self.sv, self.s8k)
```

```python
from g1 import *
from prep import *
from conv import *
from g2 import *

def begin(name, ptrs, nv=256, na=0):
    k = K(name, nv=nv, na=na)
    k("s_cmp_ge_u32 s2, 256")
    k("s_cbranch_scc1 Lend_" + name)
    k.load_ptrs(ptrs)
    return k
def end(k):
    k.E.label("Lend_" + k.name)
    k("s_endpgm")

def build_prep(name="prep_kernel", stamps=False, slot=0):
    k = begin(name, ["x", "k", "v", "shk", "gw", "cre", "cim", "ws"])
    lane, w = wave_ids(k)
    c, g = tile_ids(k); tc, dg = tile2_ids(k)
    st = Stamps(k, stamps); st("start")
    P = PrepKV(k, lane, w, c, g, 0); C = PrepC(k, lane, w, tc, dg); G = PrepGate(k, lane, w, c, g)
    P.setup(); P.loads(k)
    C.setup(); C.loads(k)
    G.setup(); G.loads(k)
    P.compute(k)
    C.stores(k)
    G.compute(k); G.store(k)
    k.E.wait_all(vm=False)
    k("s_barrier")
    P.store(k)
    st("stored")
    k.E.wait_all()
    st("drained")
    st.flush(slot)
    end(k)
    return k, st

def build_g1(name="g1_kernel", stamps=False, slot=1, sc="sc0 sc1"):
    k = begin(name, ["x", "bre", "bim", "lre", "lim", "logdt", "ws", "dbg"])
    lane, w = wave_ids(k)
    c, g = tile_ids(k)
    st = Stamps(k, stamps); st("start")
    N = Nonce(k, w); N.publish(); N.load()
    G = G1(k, lane, w, c, g, st)
    G.setup_dma()
    G.params_load()
    G.prologue_loads()
    G.setup_frag()
    G.ebuf_zero(k)
    G.params_compute(k)
    N.get()
    G.mainloop()
    G.horner()
    k.E.wait_all(vm=False)
    k("s_barrier")
    G.combine()
    G.publish_S(N.n)
    st("published")
    G.scale_z(k)
    G.carry_setup()
    G.carry()
    st("carry")
    G.final_scan()
    k.E.wait_all(vm=False)
    k("s_barrier")
    G.store_h(sc)
    st("stored")
    k.E.wait_all()
    st("drained")
    st.flush(slot)
    end(k)
    return k, st

def build_conv(name="conv_kernel", stamps=False, slot=2):
    k = begin(name, ["ssk", "ssd", "ws"])
    lane, w = wave_ids(k)
    tc, dg = tile2_ids(k)
    st = Stamps(k, stamps); st("start")
    C = Conv(k, lane, w, tc, dg, 0)
    C.setup()
    C.k_alloc(); C.k_loads(k); C.u_dma(k)
    C.k_build(k)
    k.E.wait_all()
    C.k_free(); C.u_free()
    st("built")
    C.groups(range(8))
    st("mfma")
    C.epilogue()
    st("stored")
    k.E.wait_all()
    st("drained")
    st.flush(slot)
    end(k)
    return k, st

def build_g2(name="g2_kernel", stamps=False, slot=3):
    k = begin(name, ["x", "dskip", "out", "ws"])
    lane, w = wave_ids(k)
    tc, dg = tile2_ids(k)
    st = Stamps(k, stamps); st("start")
    G = G2(k, lane, w, tc, dg, npool=14)
    G.setup(); G.alloc_main()
    G.prologue_h(3)
    for _ in range(G.npool): G.issue_stream()
    G.epi_setup(); G.epi_alloc()
    G.epi_x_dma(k); G.epi_y_dma(k); G.epi_small_loads(k)
    bg = Stream(); G.epi_pre(bg)
    G.mainloop(bg=bg, bg_from=8, stamp=st)
    G.epi_final()
    st("stored")
    k.E.wait_all()
    st("drained")
    st.flush(slot)
    end(k)
    return k, st

if __name__ == "__main__":
    import sys
    stamps = "s" in sys.argv[1:]
    ks = [build_prep(stamps=stamps), build_g1(stamps=stamps), build_conv(stamps=stamps), build_g2(stamps=stamps)]
    lds = [16384, 138240, 4 * Conv.WREG, 98304]
    t = file_text([(k.name, 256, 256, l) for (k, _), l in zip(ks, lds)], [kernel_text(k) for k, _ in ks])
    out = [a for a in sys.argv[1:] if a.endswith(".s")]
    open(out[0] if out else "all.s", "w").write(t)
    for k, st in ks:
        print(k.name, "vgprs", k.v.high, "sgprs", k.s.high, "instrs", k.E.n_ins, "nops", k.E.n_nop, ",".join(st.names))
```

```python
import re

class Reg:
    def __init__(self, kind, base, n=1):
        self.kind, self.base, self.n = kind, base, n
    def __str__(self):
        if self.n == 1:
            return f"{self.kind}{self.base}"
        return f"{self.kind}[{self.base}:{self.base + self.n - 1}]"
    __repr__ = __str__
    def __format__(self, spec):
        return str(self)
    def __getitem__(self, i):
        if isinstance(i, slice):
            a = i.start or 0
            b = self.n if i.stop is None else i.stop
            assert 0 <= a < b <= self.n, (a, b, self.n)
            return Reg(self.kind, self.base + a, b - a)
        assert 0 <= i < self.n, (i, self.n)
        return Reg(self.kind, self.base + i, 1)
    def __len__(self):
        return self.n
    def regs(self):
        return [(self.kind, self.base + i) for i in range(self.n)]


class Alloc:
    def __init__(self, kind, lo, hi):
        self.kind, self.lo, self.hi = kind, lo, hi
        self.used = [False] * hi
        self.high = lo
        self.names = {}
    def alloc(self, n=1, align=None, name=None):
        if align is None:
            align = 1 if n == 1 else 2
        b = self.lo
        while True:
            b = (b + align - 1) // align * align
            if b + n > self.hi:
                raise RuntimeError(f"out of {self.kind} registers allocating {n} ({name})")
            if not any(self.used[b:b + n]):
                break
            b += 1
        for i in range(b, b + n):
            self.used[i] = True
        self.high = max(self.high, b + n)
        r = Reg(self.kind, b, n)
        if name:
            self.names[name] = r
        return r
    def free(self, *rs):
        for r in rs:
            assert r.kind == self.kind
            for i in range(r.base, r.base + r.n):
                assert self.used[i], f"double free {r}"
                self.used[i] = False
    def used_map(self):
        return "".join("#" if self.used[i] else "." for i in range(self.hi))
    def nfree(self):
        return sum(1 for i in range(self.lo, self.hi) if not self.used[i])


_REG_RE = re.compile(r"(?<![\w.])([vas])\[(\d+):(\d+)\]|(?<![\w.])([vas])(\d+)(?![\w.\[])")
TRANS = ("v_exp_", "v_log_", "v_rcp_", "v_rsq_", "v_sqrt_", "v_sin_", "v_cos_")


def regs_of(s):
    out = []
    for m in _REG_RE.finditer(s):
        if m.group(1):
            out += [(m.group(1), i) for i in range(int(m.group(2)), int(m.group(3)) + 1)]
        else:
            out.append((m.group(4), int(m.group(5))))
    if re.search(r"\bvcc(_lo|_hi)?\b", s): out += [("x", "vcc")]
    if re.search(r"\bexec(_lo|_hi)?\b", s): out += [("x", "exec")]
    if re.search(r"\bm0\b", s): out += [("x", "m0")]
    return out


def split_ops(rest):
    ops, depth, cur = [], 0, ""
    for ch in rest:
        if ch == "[": depth += 1
        if ch == "]": depth -= 1
        if ch == "," and depth == 0:
            ops.append(cur.strip()); cur = ""
        else:
            cur += ch
    if cur.strip():
        ops.append(cur.strip())
    return ops


class Ins:
    __slots__ = ("text", "mn", "cls", "rd", "wr", "passes", "srcC", "dpp", "wide_store", "ldsdma", "ab", "nstates")
    def __init__(self, text):
        self.text = text
        t = text.split(";")[0].strip()
        parts = t.split(None, 1)
        mn = self.mn = parts[0]
        rest = parts[1] if len(parts) > 1 else ""
        ops = split_ops(rest)
        self.rd, self.wr = set(), set()
        self.passes = 0; self.srcC = set(); self.ab = set()
        self.dpp = bool(re.search(r"quad_perm|row_sh|row_ro|row_bcast|row_mirror|row_half|wave_sh|wave_ro|row_newbcast", t))
        self.wide_store = False; self.ldsdma = False; self.nstates = 1
        R = lambda lst: set(x for o in lst for x in regs_of(o))
        if mn.startswith("v_mfma"):
            self.cls = "mfma"
            self.passes = 8 if "32x32" in mn else 4
            if "32x32x2_f32" in mn or "32x32x64" in mn: self.passes = 16
            if "16x16x4_f32" in mn: self.passes = 8
            self.wr = R(ops[:1]); self.ab = R(ops[1:3]); self.srcC = R(ops[3:4])
            self.rd = self.ab | self.srcC
        elif mn.startswith("v_"):
            self.cls = "trans" if mn.startswith(TRANS) else "valu"
            if mn.startswith("v_cmpx"):
                self.wr = R(ops[:1]) | {("x", "exec")}; self.rd = R(ops[1:])
            elif mn.startswith("v_permlane") and "swap" in mn:
                self.wr = R(ops[:2]); self.rd = R(ops[:2])
            elif mn.startswith(("v_add_co", "v_sub_co", "v_subrev_co", "v_addc_co", "v_subb_co", "v_mad_u64", "v_div_scale")):
                self.wr = R(ops[:2]); self.rd = R(ops[2:])
            else:
                self.wr = R(ops[:1]); self.rd = R(ops[1:])
                if mn.startswith(("v_fmac", "v_pk_fmac", "v_dot2c", "v_mac", "v_writelane")) or "sdwa" in mn or "dst_unused:UNUSED_PRESERVE" in t:
                    self.rd |= self.wr
                if self.dpp:
                    self.rd |= self.wr
                if mn.startswith("v_cndmask") and len(ops) == 3:
                    self.rd.add(("x", "vcc"))
                if mn.startswith("v_div_fmas"):
                    self.rd.add(("x", "vcc"))
            self.rd.add(("x", "exec"))
        elif mn.startswith(("buffer_", "global_", "flat_", "scratch_")):
            self.cls = "vmem"
            lds = bool(re.search(r"\blds\b", t)) or "load_lds" in mn
            if "load" in mn and not lds:
                self.wr = R(ops[:1]); self.rd = R(ops[1:])
            elif "atomic" in mn and re.search(r"\bsc0\b", t) and mn.startswith("buffer_"):
                self.wr = R(ops[:1]); self.rd = R(ops)
            elif "atomic" in mn and re.search(r"\bsc0\b", t):
                self.wr = R(ops[:1]); self.rd = R(ops[1:])
            else:
                self.rd = R(ops)
                if "store" in mn and ("x4" in mn or "x3" in mn): self.wide_store = True
            if lds:
                self.ldsdma = True; self.rd.add(("x", "m0"))
            self.rd.add(("x", "exec"))
        elif mn.startswith("ds_"):
            self.cls = "ds"
            if mn.startswith(("ds_read", "ds_bpermute", "ds_permute", "ds_swizzle")) or "_rtn" in mn:
                self.wr = R(ops[:1]); self.rd = R(ops[1:])
            else:
                self.rd = R(ops)
            self.rd.add(("x", "exec"))
        elif mn.startswith(("s_load", "s_memtime", "s_memrealtime", "s_buffer_load")):
            self.cls = "smem"
            self.wr = R(ops[:1]); self.rd = R(ops[1:])
        elif mn.startswith("s_"):
            self.cls = "salu"
            if mn == "s_nop":
                self.nstates = int(ops[0], 0) + 1
            elif mn.startswith(("s_cmp", "s_bitcmp", "s_waitcnt", "s_barrier", "s_branch", "s_cbranch", "s_setprio", "s_sleep",
                                "s_endpgm", "s_sethalt", "s_setreg")):
                self.rd = R(ops)
                if mn.startswith("s_cbranch_vcc"): self.rd.add(("x", "vcc"))
                if mn.startswith("s_cbranch_exec"): self.rd.add(("x", "exec"))
            elif "saveexec" in mn:
                self.wr = R(ops[:1]) | {("x", "exec")}; self.rd = R(ops[1:]) | {("x", "exec")}
            else:
                self.wr = R(ops[:1]); self.rd = R(ops[1:])
                if mn.startswith(("s_addk", "s_mulk", "s_cmov")): self.rd |= self.wr
        else:
            raise ValueError("unknown instruction: " + text)


def is_sgprish(r):
    return r[0] == "s" or r == ("x", "vcc")


class Emitter:
    def __init__(self, auto_wait=True):
        self.lines = []
        self.hist = []
        self.vmq = []
        self.lgq = []
        self.n_ins = 0
        self.n_nop = 0
        self.stats = {}
        self.uid = 0
        self.prefix = ""

    def raw(self, text):
        self.lines.append(text)
    def comment(self, text):
        self.lines.append("; " + text)
    def label(self, name):
        self.lines.append(name + ":")
    def newlabel(self, base="L"):
        self.uid += 1
        return f"{base}_{self.prefix}{self.uid}"

    def _put(self, ins):
        self.lines.append("    " + ins.text)
        self.hist.append(ins)
        if len(self.hist) > 40: self.hist.pop(0)
        self.n_ins += 1
        self.stats[ins.mn] = self.stats.get(ins.mn, 0) + 1

    def nop(self, states):
        while states > 0:
            k = min(states, 16)
            self._put(Ins(f"s_nop {k - 1}")); self.n_nop += 1
            states -= k

    def _wait(self, vm=None, lgkm=None):
        parts = []
        if vm is not None:
            vm = min(vm, 63)
            if vm < len(self.vmq):
                parts.append(f"vmcnt({vm})"); self.vmq = self.vmq[len(self.vmq) - vm:] if vm else []
        if lgkm is not None:
            if any(o["smem"] for o in self.lgq): lgkm = 0
            lgkm = min(lgkm, 15)
            if lgkm < len(self.lgq):
                parts.append(f"lgkmcnt({lgkm})"); self.lgq = self.lgq[len(self.lgq) - lgkm:] if lgkm else []
        if parts:
            self._put(Ins("s_waitcnt " + " ".join(parts)))

    def wait_all(self, vm=True, lgkm=True):
        self._wait(0 if vm else None, 0 if lgkm else None)

    def force_wait(self, text):
        self._put(Ins("s_waitcnt " + text))
        m = re.search(r"vmcnt\((\d+)\)", text)
        if m:
            n = int(m.group(1)); self.vmq = self.vmq[max(0, len(self.vmq) - n):] if n else []
        m = re.search(r"lgkmcnt\((\d+)\)", text)
        if m:
            n = int(m.group(1)); self.lgq = self.lgq[max(0, len(self.lgq) - n):] if n else []

    def _need(self, q, pred):
        last = -1
        for i, o in enumerate(q):
            if pred(o): last = i
        return None if last < 0 else len(q) - 1 - last

    def wait_tag(self, *tags):
        tags = set(tags)
        vm = self._need(self.vmq, lambda o: o["tag"] in tags)
        lg = self._need(self.lgq, lambda o: o["tag"] in tags)
        self._wait(vm, lg)

    def forget(self, *tags):
        self.vmq = [o for o in self.vmq if o["tag"] not in tags]
        self.lgq = [o for o in self.lgq if o["tag"] not in tags]

    def snapshot(self):
        return (list(self.vmq), list(self.lgq))
    def restore(self, snap):
        self.vmq, self.lgq = list(snap[0]), list(snap[1])

    def outstanding(self, tag):
        return any(o["tag"] == tag for o in self.vmq + self.lgq)

    def _hazard(self, I):
        need = 0
        dist = 0
        for P in reversed(self.hist):
            req = 0
            pw = P.wr
            if P.cls == "mfma":
                n = P.passes
                tbl = {2: 0, 4: 1, 8: 2, 16: 3}[n]
                if I.cls == "mfma":
                    if pw & I.ab: req = max(req, (5, 8, 12, 20)[tbl])
                    if pw & I.srcC:
                        if pw == I.srcC and P.passes == I.passes: req = max(req, (2, 0, 0, 0)[tbl])
                        else: req = max(req, (4, 6, 10, 18)[tbl])
                elif I.cls in ("valu", "trans"):
                    if pw & (I.rd | I.wr): req = max(req, (5, 8, 12, 20)[tbl])
                    if P.srcC & I.wr: req = max(req, (1, 3, 7, 15)[tbl])
                elif I.cls in ("vmem", "ds"):
                    if pw & (I.rd | I.wr): req = max(req, (5, 8, 12, 20)[tbl])
            elif P.cls in ("valu", "trans"):
                vw = set(r for r in pw if r[0] in "va")
                sw = set(r for r in pw if is_sgprish(r))
                if I.cls == "mfma":
                    if vw & I.rd: req = max(req, 2)
                    if ("x", "exec") in pw: req = max(req, 4)
                if I.cls in ("valu", "trans"):
                    if P.cls == "trans" and vw & I.rd: req = max(req, 1)
                    if I.dpp and vw & I.rd: req = max(req, 2)
                    if I.dpp and ("x", "exec") in pw: req = max(req, 5)
                    if I.mn.startswith("v_permlane") and vw & I.rd: req = max(req, 2)
                    if I.mn.startswith("v_permlane") and ("x", "exec") in pw: req = max(req, 4)
                    if I.mn.startswith(("v_readlane", "v_readfirstlane")) and vw & I.rd: req = max(req, 1)
                    if I.mn.startswith(("v_readlane", "v_readfirstlane", "v_writelane")) and ("x", "exec") in pw: req = max(req, 4)
                    if sw & I.rd:
                        req = max(req, 4 if I.mn.startswith(("v_readlane", "v_writelane", "v_div_fmas")) else 2)
                    if "op_sel:" in P.text and P.mn.startswith("v_cvt") and vw & (I.rd | I.wr): req = max(req, 1)
                    if "sdwa" in P.mn and vw & (I.rd | I.wr): req = max(req, 1)
                if I.cls == "vmem" and sw & I.rd: req = max(req, 5)
                if I.cls == "ds" and sw & I.rd: req = max(req, 5)
                if I.cls in ("salu", "smem") and sw & I.rd: req = max(req, 4)
                if I.mn.startswith(("s_cbranch_vcc", "s_cbranch_exec")) and (pw & I.rd): req = max(req, 5)
            elif P.cls == "vmem":
                if P.wide_store:
                    data = set(r for r in P.rd if r[0] in "va")
                    if I.cls in ("valu", "trans") and data & I.wr: req = max(req, 2)
                    elif data & I.wr: req = max(req, 1)
            elif P.cls == "salu":
                if ("x", "m0") in pw and I.cls == "vmem" and I.ldsdma: req = max(req, 1)
                if ("x", "exec") in pw and I.dpp: req = max(req, 0)
            if req > dist: need = max(need, req - dist)
            dist += P.nstates
            if dist >= 20: break
        return need

    def __call__(self, text, tag=None):
        for line in text.split("\n"):
            line = line.strip()
            if line: self._one(line, tag)

    def _one(self, text, tag):
        I = Ins(text)
        touch = set(r for r in (I.rd | I.wr) if r[0] in "vas")
        vm = self._need(self.vmq, lambda o: o["dst"] & touch)
        lg = self._need(self.lgq, lambda o: o["dst"] & touch)
        if I.mn == "s_barrier":
            pass
        if vm is not None or lg is not None:
            self._wait(vm, lg)
        if I.cls in ("ds", "smem") and len(self.lgq) >= 15:
            pass
        n = self._hazard(I)
        if n: self.nop(n)
        self._put(I)
        if I.cls == "vmem":
            self.vmq.append(dict(dst=set(r for r in I.wr if r[0] in "vas"), tag=tag))
        elif I.cls == "ds":
            self.lgq.append(dict(dst=set(r for r in I.wr if r[0] in "vas"), tag=tag, smem=False))
        elif I.cls == "smem":
            self.lgq.append(dict(dst=set(r for r in I.wr if r[0] in "vas"), tag=tag, smem=True))

    def text(self):
        return "\n".join(self.lines) + "\n"


class Stream(list):
    def __init__(self, *a):
        super().__init__(*a)
        self.held = []
    def __bool__(self): return True
    def release(self, k):
        for r in self.held: (k.v if r.kind == "v" else k.s if r.kind == "s" else k.a).free(r)
        self.held = []
    def __call__(self, text, tag=None):
        for line in text.split("\n"):
            line = line.strip()
            if line: self.append((line, tag))
    def do(self, fn):
        self.append(fn)


def tfree(k, st, *regs):
    if isinstance(st, Stream): st.held += list(regs)
    else:
        for r in regs: (k.v if r.kind == "v" else k.s if r.kind == "s" else k.a).free(r)


def atomic(st, text, tag=None):
    if hasattr(st, "do"): st.do(lambda E: E(text, tag))
    else: st(text, tag)


def emit_op(E, op):
    if callable(op): op(E)
    else: E(op[0], op[1])


def emit_stream(E, s):
    for op in s: emit_op(E, op)
```

```python
from asm import *

KA = dict(x=0, lre=8, lim=16, bre=24, bim=32, cre=40, cim=48, logdt=56, dskip=64, q=72, k=80, v=88,
          shk=96, ssk=104, ssd=112, gw=120, out=128, dbg=136, ws=144)
SIZE = dict(x=4 << 20, lre=2048, lim=2048, bre=2 << 20, bim=2 << 20, cre=2 << 20, cim=2 << 20, logdt=2048, dskip=2048,
            k=4 << 20, v=4 << 20, shk=8192, ssk=4 << 20, ssd=2048, gw=2048, out=8 << 20, dbg=256, ws=256 << 20)

WS_H = 0
WS_U = 8 << 20
WS_Y = 12 << 20
WS_C = 16 << 20
WS_G = 20 << 20
WS_S = (20 << 20) + 65536
WS_F = (20 << 20) + (512 << 10)
WS_T = 22 << 20
WS_X = 24 << 20
F_PU = 0
F_PC = 8192
F_H = 16384
F_Y = 24576
F_X = 32768
F_SIZE = 40960
WS_DUMP = 32 << 20
SENTINEL = 0xFFFFFFFF
KNAME = "gated_mix__ssm_conv_s5__ssm_conv_h3__prompt_kernel"
SRD3 = 0x00020000


class K:
    def __init__(self, name, nv=256, na=0):
        self.name = name
        self.E = Emitter(); self.E.prefix = name[:4] + "_"
        self.v = Alloc("v", 1, nv)
        self.a = Alloc("a", 0, max(na, 1))
        self.s = Alloc("s", 4, 100)
        self.nv, self.na = nv, na
        self.srds = {}
        self.ptrs = {}
    def __call__(self, text, tag=None):
        self.E(text, tag)
    def V(self, n=1, align=None, name=None): return self.v.alloc(n, align, name)
    def S(self, n=1, align=None, name=None): return self.s.alloc(n, align, name)
    def A(self, n=1, align=None, name=None): return self.a.alloc(n, align, name)

    def load_ptrs(self, names):
        for n in names:
            if n not in self.ptrs:
                p = self.S(2, 2); self.ptrs[n] = p
                self(f"s_load_dwordx2 {p}, s[0:1], {KA[n]}")
    def free_ptrs(self, *names):
        for n in names: self.s.free(self.ptrs.pop(n))
    def make_srd(self, key, ptr, size, off=0, st=None):
        st = st or self
        r = self.S(4, 4)
        if ptr not in self.ptrs:
            assert off == 0
            st(f"s_load_dwordx2 {r[0:2]}, s[0:1], {KA[ptr]}")
        else:
            p = self.ptrs[ptr]
            if off:
                atomic(st, f"s_add_u32 {r[0]}, {p[0]}, {off}\ns_addc_u32 {r[1]}, {p[1]}, 0")
            else:
                st(f"s_mov_b32 {r[0]}, {p[0]}")
                st(f"s_mov_b32 {r[1]}, {p[1]}")
        st(f"s_mov_b32 {r[2]}, {size}")
        st(f"s_mov_b32 {r[3]}, {SRD3}")
        self.srds[key] = r
        return r
    def get_srd(self, key, ptr, size, off=0, st=None):
        return self.srds.get(key) or self.make_srd(key, ptr, size, off, st)
    def free_srd(self, *keys):
        for key in keys: self.s.free(self.srds.pop(key))


def kernel_text(k, vgpr_total=None, accum=None):
    nv = k.v.high
    accum = accum or ((nv + 3) // 4 * 4)
    na = k.a.high if k.na else 0
    total = vgpr_total or (accum + na)
    ns = max(k.s.high, 16)
    body = k.E.text()
    return f""".text
.globl {k.name}
.p2align 8
.type {k.name},@function
{k.name}:
{body}
.section .rodata,"a"
.p2align 6
.amdhsa_kernel {k.name}
  .amdhsa_next_free_vgpr {total}
  .amdhsa_next_free_sgpr {ns}
  .amdhsa_accum_offset {accum}
  .amdhsa_group_segment_fixed_size 0
  .amdhsa_kernarg_size 152
  .amdhsa_user_sgpr_count 2
  .amdhsa_user_sgpr_kernarg_segment_ptr 1
  .amdhsa_system_sgpr_workgroup_id_x 1
  .amdhsa_float_denorm_mode_32 3
.end_amdhsa_kernel
"""

HEADER_ARGS = open(__file__.replace("common.py", "header.txt")).read()

def file_text(launches, kernels):
    out = HEADER_ARGS
    if len(launches) == 1 and launches[0][0] == KNAME:
        n, g, b, l = launches[0]
        out += f"; @launch grid=({g},1,1) block=({b},1,1) lds={l}\n"
    else:
        for n, g, b, l in launches:
            out += f"; @launch kernel={n} grid=({g},1,1) block=({b},1,1) lds={l}\n"
    out += '.amdgcn_target "amdgcn-amd-amdhsa--gfx950"\n'
    for t in kernels:
        out += t
    return out


class Stamps:
    def __init__(self, k, enable=True, n=0):
        self.k, self.names, self.regs, self.enable = k, [], [], enable
        self.pre = [k.S(2, 2) for _ in range(n)]
    def __call__(self, name):
        if not self.enable: return
        r = self.pre.pop(0) if self.pre else self.k.S(2, 2)
        self.names.append(name); self.regs.append(r)
        self.k(f"s_memrealtime {r}" if name.startswith("rt") else f"s_memtime {r}")
    def flush(self, slot=0):
        if not self.enable: return
        k = self.k
        k.E.wait_all()
        srd = k.make_srd("stamps", "ws", 1 << 20, WS_T + slot * 65536 * 4)
        t = k.V(2, 2); o = k.V()
        k(f"v_lshrrev_b32 {o}, 6, v0")
        k(f"v_lshlrev_b32 {o}, 8, {o}")
        k(f"s_lshl_b32 s3, s2, 10")
        k(f"v_add_u32 {o}, s3, {o}")
        for i, r in enumerate(self.regs):
            k(f"v_mov_b32 {t[0]}, {r[0]}\nv_mov_b32 {t[1]}, {r[1]}")
            k(f"buffer_store_dwordx2 {t}, {o}, {srd}, 0 offen offset:{8 * i}")
            k("s_nop 1")
        k.E.wait_all()


class Nonce:
    def __init__(self, k, w):
        self.k, self.w = k, w
        self.srd = k.get_srd("dbg", "dbg", 256)
        self.n = k.S(2, 2, "nonce")
        self.v = k.V(2, 2); self.z = k.V()
    def publish(self):
        k = self.k
        lab = k.E.newlabel("Lnonce")
        snap = k.E.snapshot()
        k(f"s_or_b32 s3, s2, {self.w}")
        k(f"s_cmp_lg_u32 s3, 0")
        k(f"s_cbranch_scc1 {lab}")
        k(f"s_memrealtime {self.n}", "nt")
        k.E.wait_tag("nt")
        k(f"v_mov_b32 {self.v[0]}, {self.n[0]}\nv_mov_b32 {self.v[1]}, {self.n[1]}\nv_mov_b32 {self.z}, 0")
        k(f"buffer_store_dwordx2 {self.v}, {self.z}, {self.srd}, 0 offen sc0 sc1", "npub")
        k("s_nop 1")
        k.E.label(lab)
        k.E.restore(snap)
    def load(self, st=None):
        k = self.k; st = st or k
        st(f"v_mov_b32 {self.z}, 0")
        st(f"buffer_load_dwordx2 {self.v}, {self.z}, {self.srd}, 0 offen sc0 sc1", "nld")
    def get(self):
        k = self.k; E = k.E
        ok = E.newlabel("Lnok"); retry = E.newlabel("Lnretry")
        cnt = k.S()
        k(f"s_mov_b32 {cnt}, 0")
        k(f"v_readfirstlane_b32 {self.n[0]}, {self.v[0]}\nv_readfirstlane_b32 {self.n[1]}, {self.v[1]}")
        k(f"s_or_b32 s3, {self.n[0]}, {self.n[1]}")
        k(f"s_cmp_lg_u32 s3, 0")
        k(f"s_cbranch_scc1 {ok}")
        E.label(retry)
        E.raw(f"    buffer_load_dwordx2 {self.v}, {self.z}, {self.srd}, 0 offen sc0 sc1")
        E.raw("    s_waitcnt vmcnt(0)")
        E.raw(f"    v_readfirstlane_b32 {self.n[0]}, {self.v[0]}")
        E.raw(f"    v_readfirstlane_b32 {self.n[1]}, {self.v[1]}")
        E.raw(f"    s_add_u32 {cnt}, {cnt}, 1")
        E.raw(f"    s_nop 3")
        E.raw(f"    s_or_b32 s3, {self.n[0]}, {self.n[1]}")
        E.raw(f"    s_cmp_gt_u32 {cnt}, 20000")
        E.raw(f"    s_cbranch_scc1 {ok}")
        E.raw(f"    s_cmp_eq_u32 s3, 0")
        E.raw(f"    s_cbranch_scc1 {retry}")
        E.label(ok)
        k.s.free(cnt); k.v.free(self.v, self.z)


class Flags:
    def __init__(self, k, nonce):
        self.k, self.n = k, nonce
        self.srd = k.make_srd("flags", "ws", F_SIZE, WS_F)
    def publish(self, st, v2, voff, soff, tag="flag"):
        k = self.k
        def f(E):
            sv = self.k.S(2, 2)
            E(f"v_mov_b32 {v2[0]}, {self.n[0]}\nv_mov_b32 {v2[1]}, {self.n[1]}")
            E(f"s_mov_b64 {sv}, exec")
            E(f"s_mov_b64 exec, 1")
            E(f"buffer_store_dwordx2 {v2}, {voff}, {self.srd}, {soff} offen sc0 sc1", tag)
            E(f"s_mov_b64 exec, {sv}")
            self.k.s.free(sv)
        if hasattr(st, "do"): st.do(f)
        else: f(k.E)
    def load(self, st, dst, voff, soff="0"):
        n = len(dst)
        st(f"buffer_load_dwordx{n} {dst}, {voff}, {self.srd}, {soff} offen sc0 sc1", "flagld")
    def check(self, dst, voff, soff="0", slow_tmp=None):
        k = self.k; E = k.E
        n = len(dst) // 2
        def cmp(raw):
            put = (lambda t: E.raw("    " + t)) if raw else k
            put(f"v_cmp_ne_u64 vcc, {self.n}, {dst[0:2]}")
            if n == 2:
                m = self._m
                put(f"v_cmp_ne_u64 {m}, {self.n}, {dst[2:4]}")
                if raw: put("s_nop 4")
                put(f"s_or_b64 vcc, vcc, {m}")
            if raw: put("s_nop 4")
        self._m = k.S(2, 2); cnt = k.S()
        done = E.newlabel("Lfdone"); lab = E.newlabel("Lfpoll")
        k(f"s_mov_b32 {cnt}, 0")
        cmp(False)
        k(f"s_cbranch_vccz {done}")
        E.label(lab)
        E.raw(f"    buffer_load_dwordx{len(dst)} {dst}, {voff}, {self.srd}, {soff} offen sc0 sc1")
        E.raw("    s_waitcnt vmcnt(0)")
        cmp(True)
        E.raw(f"    s_add_u32 {cnt}, {cnt}, 1")
        E.raw(f"    s_cmp_gt_u32 {cnt}, 20000")
        E.raw(f"    s_cbranch_scc1 {done}")
        E.raw(f"    s_cbranch_vccnz {lab}")
        E.label(done)
        k.s.free(self._m, cnt)
```

```python
from common import *
from prep import hi_mask, lane16


def shell_order():
    out = []
    for s in range(8):
        for o in range(s + 1):
            if s + o > 7: continue
            if o == s: out.append((s, s))
            else: out += [(o, s), (s, o)]
    assert len(out) == 36 and len(set(out)) == 36
    return out


class Conv:
    KSTR = 4160
    KREG = 4 * 4160
    UREG = 4608
    WREG = KREG + UREG

    def __init__(self, k, lane, w, tc, dg, lds_base, sc="sc0 sc1"):
        self.k, self.lane, self.w, self.tc, self.dg, self.LB, self.sc = k, lane, w, tc, dg, lds_base, sc

    def setup(self):
        k, lane, w = self.k, self.lane, self.w
        d = self.d = k.S(name="chan")
        k(f"s_lshl_b32 {d}, {self.dg}, 7")
        k(f"s_lshl_b32 s3, {self.tc}, 2")
        k(f"s_add_u32 {d}, {d}, s3")
        k(f"s_add_u32 {d}, {d}, {w}")
        self.rowoff = k.S(name="rowoff")
        k(f"s_lshl_b32 {self.rowoff}, {d}, 12")
        r = self.srdK = k.S(4, 4); p = k.ptrs["ssk"]
        k(f"s_add_u32 {r[0]}, {p[0]}, {self.rowoff}")
        k(f"s_addc_u32 {r[1]}, {p[1]}, 0")
        k(f"s_mov_b32 {r[2]}, 4096")
        k(f"s_mov_b32 {r[3]}, {SRD3}")
        k.free_ptrs("ssk")
        self.srdU = k.get_srd("u", "ws", 4 << 20, WS_U)
        self.srdD = k.get_srd("ssd", "ssd", SIZE["ssd"])
        self.wb = k.S(name="convbase")
        k(f"s_mul_i32 {self.wb}, {w}, {self.WREG}")
        if self.LB: k(f"s_add_u32 {self.wb}, {self.wb}, {self.LB}")
        self.l16 = lane16(k, lane)
        a = k.V(); q = k.V(); t = k.V(); t2 = k.V()
        k(f"v_and_b32 {a}, 15, {lane}")
        k(f"v_lshrrev_b32 {q}, 4, {lane}")
        self.aA = k.V(name="aA"); self.aB = k.V(name="aB"); self.aE = k.V(name="aE")
        k(f"v_add_u32 {t}, 1, {a}")
        k(f"v_and_b32 {t2}, 3, {t}")
        k(f"v_mul_u32_u24 {t2}, {self.KSTR}, {t2}")
        k(f"v_and_b32 {t}, 28, {t}")
        k(f"v_lshl_add_u32 {t2}, {t}, 1, {t2}")
        k(f"v_lshl_add_u32 {t2}, {q}, 4, {t2}")
        k(f"v_add_u32 {self.aA}, {self.wb}, {t2}")
        k(f"s_add_u32 s3, {self.wb}, {self.KREG + 480}")
        k(f"v_lshlrev_b32 {t}, 5, {a}")
        k(f"v_sub_u32 {t}, s3, {t}")
        k(f"v_lshl_add_u32 {self.aB}, {q}, 4, {t}")
        k(f"v_lshlrev_b32 {t2}, 3, {q}")
        k(f"v_sub_u32 {t}, {t}, {t2}")
        k(f"v_add_u32 {self.aE}, 24, {t}")
        self.yo = k.V(name="yo")
        k(f"v_and_b32 {t}, 1, {q}")
        k(f"v_lshlrev_b32 {t}, 9, {t}")
        k(f"v_lshl_add_u32 {t}, {a}, 5, {t}")
        k(f"v_lshrrev_b32 {t2}, 1, {q}")
        k(f"v_lshl_add_u32 {self.yo}, {t2}, 4, {t}")
        k.v.free(a, q, t, t2)
        self.hm = hi_mask(k)
        self.acc = None

    def k_alloc(self, st=None):
        k = self.k; st = st or k
        self.kD = [k.V(4, 2) for _ in range(5)]; self.kN = [k.V(2, 2) for _ in range(5)]
        self.kT = [k.V(4, 2) for _ in range(3)]
        self.kh = k.V(2, 1); self.kw = k.V()
        self.vD = k.V(name="ssmD")
        st(f"v_subrev_u32 {self.kh[0]}, 32, {self.l16}")
        st(f"v_min_u32 {self.kh[0]}, 0x7fff0000, {self.kh[0]}")
        st(f"v_subrev_u32 {self.kh[1]}, 16, {self.l16}")
        st(f"v_min_u32 {self.kh[1]}, 0x7fff0000, {self.kh[1]}")
        st(f"v_add_u32 {self.kw}, {self.wb}, {self.l16}")

    def k_loads(self, st):
        k = self.k
        st(f"buffer_load_dwordx4 {self.kD[4]}, {self.kh[0]}, {self.srdK}, 0 offen")
        st(f"buffer_load_dwordx2 {self.kN[4]}, {self.kh[1]}, {self.srdK}, 0 offen")
        for p in range(4):
            st(f"buffer_load_dwordx4 {self.kD[p]}, {self.l16}, {self.srdK}, 0 offen offset:{1024 * p}")
            st(f"buffer_load_dwordx2 {self.kN[p]}, {self.l16}, {self.srdK}, 0 offen offset:{1024 * p + 16}")
        t = self.kT[0][0]
        atomic(st, f"s_lshl_b32 s3, {self.d}, 1\nv_mov_b32 {self.vD}, s3")
        st(f"buffer_load_ushort {self.vD}, {self.vD}, {self.srdD}, 0 offen")

    def k_build(self, st):
        A, T, B = self.kT
        for p in (4, 0, 1, 2, 3):
            D, N = self.kD[p], self.kN[p]
            off = 0 if p == 4 else 32 + 1024 * p
            dd = [D[0], D[1], D[2], D[3], N[0], N[1]]
            st(f"ds_write_b128 {self.kw}, {D} offset:{off}", "kcw")
            for i in range(4):
                st(f"v_alignbit_b32 {A[i]}, {dd[i + 1]}, {dd[i]}, 16")
            st(f"v_pk_mov_b32 {T[0:2]}, {D[0:2]}, {D[2:4]} op_sel:[1,0]")
            st(f"v_pk_mov_b32 {T[2:4]}, {D[2:4]}, {N[0:2]} op_sel:[1,0]")
            st(f"ds_write_b128 {self.kw}, {A} offset:{off + self.KSTR}", "kcw")
            st(f"v_pk_mov_b32 {B[0:2]}, {A[0:2]}, {A[2:4]} op_sel:[1,0]")
            st(f"v_mov_b32 {B[2]}, {A[3]}")
            st(f"v_alignbit_b32 {B[3]}, {dd[5]}, {dd[4]}, 16")
            st(f"ds_write_b128 {self.kw}, {T} offset:{off + 2 * self.KSTR}", "kcw")
            st(f"ds_write_b128 {self.kw}, {B} offset:{off + 3 * self.KSTR}", "kcw")
        st(f"v_lshlrev_b32 {self.vD}, 16, {self.vD}")

    def k_free(self):
        k = self.k
        k.v.free(*self.kD, *self.kN, *self.kT, self.kh, self.kw)
        k.s.free(self.srdK); k.free_srd("ssd")

    def u_dma(self, st, sc=""):
        k = self.k
        z = self.uz = k.V(2, 2); a = self.ua = k.V()
        st(f"s_add_u32 m0, {self.wb}, {self.KREG}")
        for p in range(4):
            st(f"buffer_load_dwordx4 {self.l16}, {self.srdU}, {self.rowoff} offen offset:{1024 * p} {sc} lds", "udma")
        st(f"v_mov_b32 {z[0]}, 0\nv_mov_b32 {z[1]}, 0")
        st(f"v_lshrrev_b32 {a}, 1, {self.l16}")
        st(f"v_add_u32 {a}, {self.wb}, {a}")
        st(f"ds_write_b64 {a}, {z} offset:{self.KREG + 4096}", "kcw")
    def u_free(self):
        self.k.v.free(self.uz, self.ua)

    def groups(self, rhos, bg=None, npool=14, lead=7, per_slot=1):
        k = self.k; E = k.E
        bg = list(bg or [])
        if self.acc is None:
            self.acc = [k.V(4, 2) for _ in range(8)]
            self.started = set()
        order = shell_order()
        slots = [(rho, mu, nu) for rho in rhos for (mu, nu) in order]
        first, last = {}, {}
        for s, (rho, mu, nu) in enumerate(slots):
            for key in (("A", rho, nu), ("B", rho, mu)):
                first.setdefault(key, s); last[key] = s
        pending = sorted(first, key=lambda x: (first[x], x[0]))
        pool = [k.V(4, 2) for _ in range(npool)]
        free = list(pool); where = {}
        def issue(key):
            r = free.pop(0); where[key] = r
            kind, rho, i = key
            if kind == "A":
                n = 8 * i - rho
                off = 448 + 64 * n
                k(f"ds_read_b64 {r[0:2]}, {self.aA} offset:{off}")
                k(f"ds_read_b64 {r[2:4]}, {self.aA} offset:{off + 8}")
            else:
                m = 8 * i + rho
                k(f"ds_read_b128 {r}, {self.aB} offset:{4032 - 64 * m}")
        while pending and first[pending[0]] < lead and free:
            issue(pending.pop(0))
        for s, (rho, mu, nu) in enumerate(slots):
            ct = mu + nu
            a, b = where[("A", rho, nu)], where[("B", rho, mu)]
            cin = f"{self.acc[ct]}" if ct in self.started else "0"
            self.started.add(ct)
            k(f"v_mfma_f32_16x16x32_bf16 {self.acc[ct]}, {a}, {b}, {cin}")
            for key in (("A", rho, nu), ("B", rho, mu)):
                if last[key] == s: free.append(where[key])
            n = 0
            while pending and first[pending[0]] <= s + lead and free and n < 1:
                issue(pending.pop(0)); n += 1
            for _ in range(per_slot if n == 0 else max(per_slot - 1, 0)):
                if bg: emit_op(E, bg.pop(0))
            if s + 1 < len(slots):
                r2, m2, n2 = slots[s + 1]
                for key in (("A", r2, n2), ("B", r2, m2)):
                    while key not in where:
                        assert free, "conv fragment pool too small"
                        issue(pending.pop(0))
        emit_stream(E, bg)
        k.v.free(*pool)

    def epilogue(self, st=None):
        k = self.k; st = st or k
        self.srdY = k.get_srd("y", "ws", 4 << 20, WS_Y, st)
        e = [k.V(2, 2) for _ in range(8)]
        t = k.V(4, 1); Q = [k.V(4, 2) for _ in range(2)]
        so = k.S()
        for ct in range(8):
            st(f"ds_read_b64 {e[ct]}, {self.aE} offset:{3584 - 512 * ct}")
        st(f"s_mov_b32 {so}, {self.rowoff}")
        for ct in range(8):
            q = Q[(ct >> 1) & 1]; a = self.acc[ct]; h = 2 * (ct & 1)
            st(f"v_and_b32 {t[0]}, {self.hm}, {e[ct][1]}")
            st(f"v_lshlrev_b32 {t[1]}, 16, {e[ct][1]}")
            st(f"v_and_b32 {t[2]}, {self.hm}, {e[ct][0]}")
            st(f"v_lshlrev_b32 {t[3]}, 16, {e[ct][0]}")
            for r in range(4):
                st(f"v_fmac_f32 {a[r]}, {self.vD}, {t[r]}")
            st(f"v_cvt_pk_bf16_f32 {q[h]}, {a[0]}, {a[1]}")
            st(f"v_cvt_pk_bf16_f32 {q[h + 1]}, {a[2]}, {a[3]}")
            if ct & 1:
                st(f"v_permlane16_swap_b32 {q[0]}, {q[2]}")
                st(f"v_permlane16_swap_b32 {q[1]}, {q[3]}")
                st(f"buffer_store_dwordx4 {q}, {self.yo}, {self.srdY}, {so} offen offset:{1024 * (ct >> 1)} {self.sc}", "yst")
        self._epi = (e, t, Q, so)
    def epilogue_free(self):
        k = self.k
        e, t, Q, so = self._epi
        k.v.free(*e, t, *Q, *self.acc, self.aA, self.aB, self.aE, self.yo, self.vD); k.s.free(so, self.wb)
```

```python
from common import *

LOG2E = 0x3fb8aa3b
INV2PI = 0x3e22f983


def wave_ids(k):
    lane = k.V(name="lane"); w = k.S(name="wave")
    k(f"v_lshrrev_b32 {lane}, 6, v0")
    k(f"v_readfirstlane_b32 {w}, {lane}")
    k(f"v_and_b32 {lane}, 63, v0")
    return lane, w


def tile_ids(k):
    c = k.S(name="c"); g = k.S(name="g"); t = k.S()
    k(f"s_and_b32 {t}, s2, 7")
    k(f"s_lshr_b32 {c}, {t}, 1")
    k(f"s_lshl_b32 {c}, {c}, 2")
    k(f"s_and_b32 {g}, {t}, 1")
    k(f"s_lshl_b32 {g}, {g}, 3")
    k(f"s_lshr_b32 {t}, s2, 3")
    k(f"s_and_b32 s3, {t}, 3")
    k(f"s_add_u32 {c}, {c}, s3")
    k(f"s_lshr_b32 {t}, {t}, 2")
    k(f"s_add_u32 {g}, {g}, {t}")
    k.s.free(t)
    return c, g


class G1:
    NST = 16
    SLOT = 32768
    def __init__(self, k, lane, w, c, g, stamps=None):
        self.k, self.lane, self.w, self.c, self.g = k, lane, w, c, g
        self.stamp = stamps or (lambda name: None)

    def setup_dma(self):
        k, lane, w, c, g = self.k, self.lane, self.w, self.c, self.g
        self.srdA = k.get_srd("x", "x", SIZE["x"])
        r = k.S(4, 4); self.srdB = r
        pre, pim = k.ptrs["bre"], k.ptrs["bim"]
        k(f"s_and_b32 s3, {w}, 1")
        k(f"s_cmp_eq_u32 s3, 0")
        k(f"s_cselect_b32 {r[0]}, {pre[0]}, {pim[0]}")
        k(f"s_cselect_b32 {r[1]}, {pre[1]}, {pim[1]}")
        k(f"s_mov_b32 {r[2]}, {SIZE['bre']}")
        k(f"s_mov_b32 {r[3]}, {SRD3}")
        k.free_ptrs("bre", "bim")
        self.voffA = k.V(4, 1); self.voffB = k.V(4, 1)
        rsub = k.V(); ch = k.V(); row = k.V(); t0 = k.V(); t1 = k.V()
        k(f"v_lshrrev_b32 {rsub}, 3, {lane}")
        k(f"v_and_b32 {ch}, 7, {lane}")
        sw = k.S()
        for q in range(4):
            k(f"s_lshl_b32 {sw}, {w}, 5")
            k(f"s_add_u32 {sw}, {sw}, {8 * q}")
            k(f"v_add_u32 {row}, {sw}, {rsub}")
            k(f"v_bfe_u32 {t0}, {row}, 1, 3")
            k(f"v_xor_b32 {t0}, {t0}, {ch}")
            k(f"v_lshlrev_b32 {t0}, 4, {t0}")
            tl = self.voffA[q]
            k(f"v_and_b32 {tl}, 64, {row}")
            k(f"v_bfe_u32 {t1}, {row}, 2, 1")
            k(f"v_lshl_add_u32 {tl}, {t1}, 5, {tl}")
            k(f"v_and_b32 {t1}, 1, {row}")
            k(f"v_lshl_add_u32 {tl}, {t1}, 4, {tl}")
            k(f"v_bfe_u32 {t1}, {row}, 5, 1")
            k(f"v_lshl_add_u32 {tl}, {t1}, 3, {tl}")
            k(f"v_bfe_u32 {t1}, {row}, 3, 2")
            k(f"v_lshl_add_u32 {tl}, {t1}, 1, {tl}")
            k(f"v_bfe_u32 {t1}, {row}, 1, 1")
            k(f"v_add_u32 {tl}, {tl}, {t1}")
            k(f"s_lshl_b32 s3, {c}, 7")
            k(f"v_add_u32 {tl}, s3, {tl}")
            k(f"v_lshl_add_u32 {tl}, {tl}, 11, {t0}")
            pb = self.voffB[q]
            k(f"v_bfe_u32 {pb}, {row}, 6, 1")
            k(f"v_lshlrev_b32 {pb}, 5, {pb}")
            k(f"v_and_b32 {t1}, 31, {row}")
            k(f"v_add_u32 {pb}, {pb}, {t1}")
            k(f"s_lshl_b32 s3, {g}, 6")
            k(f"v_add_u32 {pb}, s3, {pb}")
            k(f"v_lshl_add_u32 {pb}, {pb}, 11, {t0}")
        k.v.free(rsub, ch, row, t0, t1); k.s.free(sw)
        self.m0base = k.S(name="m0base")
        k(f"s_lshl_b32 {self.m0base}, {w}, 12")

    def dma_ops(self, st):
        k = self.k; slot = st % 4; ops = []
        for half, (voff, srd) in enumerate(((self.voffA, self.srdA), (self.voffB, self.srdB))):
            for q in range(4):
                m0 = slot * self.SLOT + half * 16384 + q * 1024
                ops.append([(f"s_add_u32 m0, {self.m0base}, {m0}", None),
                            (f"buffer_load_dwordx4 {voff[q]}, {srd}, {self.koffs[st]} offen lds", f"g1st{st}")])
        return ops

    def setup_frag(self):
        k, lane, w = self.k, self.lane, self.w
        self.adA = [[k.V() for kk in range(4)] for hi in range(2)]
        self.adB = [[k.V() for kk in range(4)] for hi in range(2)]
        row = k.V(); f = k.V(); t = k.V(); sa = k.S(); sb = k.S()
        k(f"v_and_b32 {row}, 31, {lane}")
        k(f"v_bfe_u32 {f}, {row}, 1, 3")
        k(f"v_lshrrev_b32 {t}, 5, {lane}")
        k(f"v_xor_b32 {f}, {f}, {t}")
        k(f"v_lshlrev_b32 {f}, 4, {f}")
        k(f"v_lshl_add_u32 {f}, {row}, 7, {f}")
        k(f"s_lshr_b32 {sa}, {w}, 1")
        k(f"s_lshl_b32 {sa}, {sa}, 13")
        k(f"s_and_b32 {sb}, {w}, 1")
        k(f"s_lshl_b32 {sb}, {sb}, 13")
        k(f"s_add_u32 {sb}, {sb}, 16384")
        for kk in range(4):
            k(f"v_xor_b32 {t}, {32 * kk}, {f}")
            k(f"v_add_u32 {self.adA[0][kk]}, {sa}, {t}")
            k(f"v_add_u32 {self.adB[0][kk]}, {sb}, {t}")
            k(f"v_add_u32 {self.adA[1][kk]}, 0x10000, {self.adA[0][kk]}")
            k(f"v_add_u32 {self.adB[1][kk]}, 0x10000, {self.adB[0][kk]}")
        k.v.free(row, f, t); k.s.free(sa, sb)
        self.fr = [dict(A=[k.V(4, 4), k.V(4, 4)], B=[k.V(4, 4), k.V(4, 4)]) for s in range(2)]
        self.acc = [[k.V(16, 4) for pl in range(2)] for rt in range(2)]

    def frag_reads(self, st, kk):
        slot = st % 4; hi = slot >> 1; off = (slot & 1) * self.SLOT
        fs = self.fr[kk & 1]
        tag = f"fr{st}_{kk}"
        return [(f"ds_read_b128 {fs['A'][0]}, {self.adA[hi][kk]} offset:{off}", tag),
                (f"ds_read_b128 {fs['B'][0]}, {self.adB[hi][kk]} offset:{off}", tag),
                (f"ds_read_b128 {fs['B'][1]}, {self.adB[hi][kk]} offset:{off + 4096}", tag),
                (f"ds_read_b128 {fs['A'][1]}, {self.adA[hi][kk]} offset:{off + 4096}", tag)]

    def mfmas(self, st, kk):
        fs = self.fr[kk & 1]; out = []
        for rt, pl in ((0, 0), (0, 1), (1, 0), (1, 1)):
            cin = "0" if (st == 0 and kk == 0) else f"{self.acc[rt][pl]}"
            out.append(f"v_mfma_f32_32x32x16_bf16 {self.acc[rt][pl]}, {fs['A'][rt]}, {fs['B'][pl]}, {cin}")
        return out

    def prologue_loads(self):
        k = self.k
        self.koffs = {}
        self.kreg = k.S(name="kreg")
        for st in range(self.NST): self.koffs[st] = self.kreg
        for st in range(4):
            k(f"s_mov_b32 {self.kreg}, {128 * st}")
            for grp in self.dma_ops(st):
                for t, tag in grp: k(t, tag)

    def mainloop(self, events=None, prebar=None, postbar=None, nslot=4):
        k = self.k; E = k.E
        events = events or {}; prebar = prebar or {}; postbar = postbar or {}
        bg = []
        E.wait_tag("g1st0")
        k("s_barrier")
        for t, tag in self.frag_reads(0, 0): k(t, tag)
        self.stamp("g1_loop_start")
        pend_dma = []
        for st in range(self.NST):
            bg += list(events.get(st, []))
            if st in getattr(self, "stamp_at", ()): self.stamp(f"a{st}")
            for kk in range(4):
                mf = self.mfmas(st, kk)
                fill = [[], [], [], []]
                if kk < 3:
                    rd = self.frag_reads(st, kk + 1)
                    fill[0] += rd[0:2]; fill[1] += rd[2:4]
                else:
                    E.wait_tag(f"fr{st}_3")
                    if st + 1 < self.NST: E.wait_tag(f"g1st{st + 1}")
                    if st in prebar: prebar[st]()
                    k("s_barrier")
                    if st in postbar: postbar[st]()
                    bg += list(events.get(st + 0.5, []))
                    if st + 1 < self.NST:
                        rd = self.frag_reads(st + 1, 0)
                        fill[0] += rd[0:2]; fill[1] += rd[2:4]
                    nxt = st + 4
                    if nxt < self.NST:
                        pend_dma = [("koff", nxt)] + self.dma_ops(nxt)
                pre = [[], [], [], []]
                n = 0
                while pend_dma and n < 2:
                    op = pend_dma.pop(0)
                    if op[0] == "koff":
                        pre[1].append((f"s_mov_b32 {self.kreg}, {128 * op[1]}", None)); continue
                    pre[2 + n].append(op[0]); fill[2 + n].append(op[1]); n += 1
                for i in range(4):
                    for t, tag in pre[i]: k(t, tag)
                    k(mf[i])
                    for t, tag in fill[i]: k(t, tag)
                    nfill = len(fill[i]) + (len(pre[i + 1]) if i < 3 else 0)
                    for _ in range(max(nslot - nfill, 0)):
                        if bg: emit_op(E, bg.pop(0))
        self.bg_left = len(bg)
        emit_stream(E, bg)
        self.stamp("g1_loop_end")

    def free_loop(self):
        k = self.k
        k.v.free(self.voffA, self.voffB)
        for hi in range(2): k.v.free(*self.adA[hi], *self.adB[hi])
        for f in self.fr: k.v.free(*f["A"], *f["B"])
        k.s.free(self.m0base, self.kreg, self.srdB)

    def params_load(self):
        k, lane, w, g = self.k, self.lane, self.w, self.g
        self.ploc = k.V(name="ploc")
        k(f"s_and_b32 s3, {w}, 1")
        k(f"s_lshl_b32 s3, s3, 5")
        k(f"v_and_b32 {self.ploc}, 31, {lane}")
        k(f"v_add_u32 {self.ploc}, s3, {self.ploc}")
        off = k.V()
        k(f"s_lshl_b32 s3, {g}, 6")
        k(f"v_add_u32 {off}, s3, {self.ploc}")
        k(f"v_lshlrev_b32 {off}, 1, {off}")
        self.p_lre, self.p_lim, self.p_ldt = k.V(), k.V(), k.V()
        for dst, nm in ((self.p_lre, "lre"), (self.p_lim, "lim"), (self.p_ldt, "logdt")):
            srd = k.get_srd(nm, nm, 2048)
            k(f"buffer_load_ushort {dst}, {off}, {srd}, 0 offen")
            k.free_srd(nm)
        self._poff = off

    def params_compute(self, st):
        k = self.k
        lre, lim, ldt = self.p_lre, self.p_lim, self.p_ldt
        self.lam = k.V(2, 2, "lam"); self.coef = k.V(2, 2, "coef")
        self.l16 = k.V(2, 2, "l16"); self.l128 = k.V(2, 2, "l128")
        self.MM = k.V(4, 2, "MM")
        t = k.V(6, 2); self._ptmp = t
        lam, coef = self.lam, self.coef
        st(f"v_lshlrev_b32 {lre}, 16, {lre}")
        st(f"v_lshlrev_b32 {lim}, 16, {lim}")
        st(f"v_lshlrev_b32 {ldt}, 16, {ldt}")
        st(f"v_mul_f32 {t[0]}, {LOG2E}, {ldt}")
        st(f"v_exp_f32 {t[0]}, {t[0]}")
        st(f"v_cvt_pk_bf16_f32 {t[0]}, {t[0]}, {t[0]}")
        st(f"v_lshlrev_b32 {t[0]}, 16, {t[0]}")
        st(f"v_mul_f32 {t[1]}, {t[0]}, {lre}")
        st(f"v_mul_f32 {t[2]}, {t[0]}, {lim}")
        st(f"v_mul_f32 {t[1]}, {LOG2E}, {t[1]}")
        st(f"v_exp_f32 {t[1]}, {t[1]}")
        st(f"v_mul_f32 {t[2]}, {INV2PI}, {t[2]}")
        st(f"v_fract_f32 {t[2]}, {t[2]}")
        st(f"v_cos_f32 {t[3]}, {t[2]}")
        st(f"v_sin_f32 {t[4]}, {t[2]}")
        st(f"v_mul_f32 {lam[0]}, {t[1]}, {t[3]}")
        st(f"v_mul_f32 {lam[1]}, {t[1]}, {t[4]}")
        st(f"v_add_f32 {t[0]}, -1.0, {lam[0]}")
        st(f"v_mul_f32 {t[1]}, {lre}, {lre}")
        st(f"v_fmac_f32 {t[1]}, {lim}, {lim}")
        st(f"v_rcp_f32 {t[1]}, {t[1]}")
        st(f"v_add_f32 {t[1]}, {t[1]}, {t[1]}")
        st(f"v_mul_f32 {t[2]}, {t[0]}, {lre}")
        st(f"v_fmac_f32 {t[2]}, {lam[1]}, {lim}")
        st(f"v_mul_f32 {t[3]}, {lam[1]}, {lre}")
        st(f"v_fma_f32 {t[3]}, -{t[0]}, {lim}, {t[3]}")
        st(f"v_mul_f32 {coef[0]}, {t[2]}, {t[1]}")
        st(f"v_mul_f32 {coef[1]}, {t[3]}, {t[1]}")
        def csq(d, a):
            st(f"v_mul_f32 {d[0]}, {a[1]}, {a[1]}")
            st(f"v_fma_f32 {d[0]}, {a[0]}, {a[0]}, -{d[0]}")
            st(f"v_mul_f32 {d[1]}, {a[0]}, {a[1]}")
            st(f"v_add_f32 {d[1]}, {d[1]}, {d[1]}")
        def cmul(d, a, b):
            st(f"v_mul_f32 {d[0]}, {a[1]}, {b[1]}")
            st(f"v_fma_f32 {d[0]}, {a[0]}, {b[0]}, -{d[0]}")
            st(f"v_mul_f32 {d[1]}, {a[0]}, {b[1]}")
            st(f"v_fmac_f32 {d[1]}, {a[1]}, {b[0]}")
        A, B = t[0:2], t[2:4]
        csq(A, lam); csq(B, A); csq(A, B); csq(self.l16, A)
        l32, l64 = t[0:2], t[2:4]
        csq(l32, self.l16); csq(l64, l32); csq(self.l128, l64)
        mh = k.S(2, 2); mw = k.S(2, 2); self.mask_hh, self.mask_wt = mh, mw
        st(f"s_mov_b32 {mh[0]}, 0")
        st(f"s_mov_b32 {mh[1]}, -1")
        st(f"s_lshr_b32 s3, {self.w}, 1")
        atomic(st, f"s_cmp_eq_u32 s3, 1\ns_cselect_b32 {mw[0]}, -1, 0\ns_cselect_b32 {mw[1]}, -1, 0")
        one, zero = "1.0", "0"
        st(f"v_cndmask_b32 {l32[0]}, 1.0, {l32[0]}, {mh}")
        st(f"v_cndmask_b32 {l32[1]}, 0, {l32[1]}, {mh}")
        st(f"v_cndmask_b32 {l64[0]}, 1.0, {l64[0]}, {mw}")
        st(f"v_cndmask_b32 {l64[1]}, 0, {l64[1]}, {mw}")
        MA = t[4:6]
        cmul(MA, l32, l64)
        MB = t[0:2]
        cmul(MB, MA, self.l16)
        M = self.MM
        st(f"v_mov_b32 {M[0]}, {MA[0]}")
        st(f"v_mov_b32 {M[1]}, {MB[0]}")
        st(f"v_mov_b32 {M[2]}, {MA[1]}")
        st(f"v_mov_b32 {M[3]}, {MB[1]}")

    def params_free_tmp(self):
        self.k.v.free(self._ptmp, self.p_lre, self.p_lim, self.p_ldt, self._poff)
        self.k.s.free(self.mask_wt)

    def zpair(self, pl, step):
        rt, m = step >> 3, step & 7
        return self.acc[rt][pl][2 * m:2 * m + 2]

    BC_LO = "op_sel:[0,0,0] op_sel_hi:[1,0,1]"
    BC_HI = "op_sel:[0,1,0] op_sel_hi:[1,1,1]"
    BC_HI_NEG = BC_HI + " neg_lo:[0,1,0] neg_hi:[0,1,0]"

    def cfma(self, st, dr, di, ar, ai, L, zr, zi, t1, t2):
        st(f"v_pk_fma_f32 {t1}, {ai}, {L}, {zr} {self.BC_HI_NEG}")
        st(f"v_pk_fma_f32 {t2}, {ar}, {L}, {zi} {self.BC_HI}")
        st(f"v_pk_fma_f32 {dr}, {ar}, {L}, {t1} {self.BC_LO}")
        st(f"v_pk_fma_f32 {di}, {ai}, {L}, {t2} {self.BC_LO}")

    EBUF = 131072
    def ebuf_zero(self, st):
        k = self.k
        z = k.V(4, 2); a = k.V()
        st(f"v_mov_b32 {z[0]}, 0\nv_mov_b32 {z[1]}, 0\nv_mov_b32 {z[2]}, 0")
        st(f"v_mul_u32_u24 {a}, 12, v0")
        st(f"v_add_u32 {a}, {self.EBUF}, {a}")
        st(f"ds_write_b32 {a}, {z[0]}\nds_write_b32 {a}, {z[0]} offset:4\nds_write_b32 {a}, {z[0]} offset:8", "ebz")
        self._ebz = (z, a)
    def ebuf_zero_free(self):
        self.k.v.free(*self._ebz)

    def horner(self):
        k = self.k
        self.Er, self.Ei = k.V(2, 2), k.V(2, 2)
        self.t1, self.t2 = k.V(2, 2), k.V(2, 2)
        Er, Ei = self.Er, self.Ei
        for step in range(16):
            zr, zi = self.zpair(0, step), self.zpair(1, step)
            if step == 0:
                continue
            ar, ai = (self.zpair(0, 0), self.zpair(1, 0)) if step == 1 else (Er, Ei)
            self.cfma(k, Er, Ei, ar, ai, self.lam, zr, zi, self.t1, self.t2)
        ad = k.V(name="eaddr"); self.eaddr = ad
        t = k.V()
        k(f"v_lshrrev_b32 {t}, 5, {self.lane}")
        k(f"v_lshlrev_b32 {t}, 10, {t}")
        k(f"v_lshl_add_u32 {ad}, {self.ploc}, 2, {t}")
        k(f"s_lshr_b32 s3, {self.w}, 1")
        k(f"s_lshl_b32 s3, s3, 11")
        k(f"s_add_u32 s3, s3, {self.EBUF}")
        k(f"v_add_u32 {ad}, s3, {ad}")
        k.v.free(t)
        k(f"ds_write2st64_b32 {ad}, {Er[0]}, {Ei[0]} offset0:12 offset1:13", "ew")
        k(f"ds_write2st64_b32 {ad}, {Er[1]}, {Ei[1]} offset0:14 offset1:15", "ew")

    def combine(self):
        k = self.k; ad = self.eaddr
        e = k.V(14, 2)
        for m in range(6):
            k(f"ds_read2st64_b32 {e[2 * m:2 * m + 2]}, {ad} offset0:{2 * m} offset1:{2 * m + 1}")
        L = self.l16
        P = k.V(2, 2); T = k.V(2, 2)
        cur = e[0:2]
        def step(d, a, z):
            k(f"v_fma_f32 {T[0]}, -{L[1]}, {a[1]}, {z[0]}")
            k(f"v_fma_f32 {T[1]}, {L[1]}, {a[0]}, {z[1]}")
            k(f"v_fma_f32 {d[0]}, {L[0]}, {a[0]}, {T[0]}")
            k(f"v_fma_f32 {d[1]}, {L[0]}, {a[1]}, {T[1]}")
        for m in range(1, 6):
            step(e[2 * m:2 * m + 2], cur, e[2 * m:2 * m + 2]); cur = e[2 * m:2 * m + 2]
        PA = cur
        EA = (self.Er[0], self.Ei[0]); EB = (self.Er[1], self.Ei[1])
        PB = P
        step(PB, PA, EA)
        self.Sv = k.V(2, 2, "Sv")
        step(self.Sv, PB, EB)
        self.PP = k.V(4, 2, "PP")
        k(f"v_mov_b32 {self.PP[0]}, {PA[0]}\nv_mov_b32 {self.PP[1]}, {PB[0]}\nv_mov_b32 {self.PP[2]}, {PA[1]}\nv_mov_b32 {self.PP[3]}, {PB[1]}")
        k.v.free(e, P, T)
        k.v.free(self.Er, self.Ei, self.eaddr, self.l16)

    def publish_S(self, nonce):
        k = self.k
        self.nonce = nonce
        self.srdS = srd = k.S(4, 4)
        ws = k.ptrs["ws"]
        k(f"s_lshl_b32 s3, {self.g}, 14")
        k(f"s_add_u32 s3, s3, {WS_S}")
        k(f"s_add_u32 {srd[0]}, {ws[0]}, s3")
        k(f"s_addc_u32 {srd[1]}, {ws[1]}, 0")
        k(f"s_mov_b32 {srd[2]}, 16384")
        k(f"s_mov_b32 {srd[3]}, {SRD3}")
        self.soff = off = k.V(name="soff")
        k(f"v_lshlrev_b32 {off}, 4, {self.ploc}")
        so = k.S(); self.s_coff = so
        k(f"s_lshl_b32 {so}, {self.c}, 10")
        lab = k.E.newlabel("Lnopub")
        k(f"s_lshr_b32 s3, {self.w}, 1")
        k(f"s_cmp_eq_u32 s3, 0")
        k(f"s_cbranch_scc1 {lab}")
        Q = k.V(4, 2)
        k(f"v_mov_b32 {Q[0]}, {self.Sv[0]}\nv_mov_b32 {Q[1]}, {self.Sv[1]}")
        k(f"v_mov_b32 {Q[2]}, {nonce[0]}\nv_mov_b32 {Q[3]}, {nonce[1]}")
        sv = k.S(2, 2)
        k(f"s_mov_b64 {sv}, exec")
        k(f"s_mov_b64 exec, {self.mask_hh}")
        k(f"buffer_store_dwordx4 {Q}, {off}, {srd}, {so} offen sc0 sc1", "spub")
        k(f"s_mov_b64 exec, {sv}")
        k("s_nop 1")
        k.s.free(sv); k.v.free(Q, self.Sv)
        k.E.label(lab)
        k.E.forget("spub")

    def scale_z(self, st):
        C = self.coef
        for step in range(16):
            zr, zi = self.zpair(0, step), self.zpair(1, step)
            t1, t2 = self.t1, self.t2
            st(f"v_pk_mul_f32 {t1}, {zi}, {C} op_sel:[0,1] op_sel_hi:[1,1] neg_lo:[0,1] neg_hi:[0,1]")
            st(f"v_pk_mul_f32 {t2}, {zr}, {C} op_sel:[0,1] op_sel_hi:[1,1]")
            st(f"v_pk_fma_f32 {zr}, {zr}, {C}, {t1} {self.BC_LO}")
            st(f"v_pk_fma_f32 {zi}, {zi}, {C}, {t2} {self.BC_LO}")

    def scale_z_plain(self, st):
        C = self.coef; t1, t2 = self.t1, self.t2
        for step in range(16):
            zr, zi = self.zpair(0, step), self.zpair(1, step)
            for h in range(2):
                st(f"v_mul_f32 {t1[h]}, {C[1]}, {zi[h]}")
                st(f"v_mul_f32 {t2[h]}, {C[1]}, {zr[h]}")
            for h in range(2):
                st(f"v_fma_f32 {zr[h]}, {C[0]}, {zr[h]}, -{t1[h]}")
                st(f"v_fma_f32 {zi[h]}, {C[0]}, {zi[h]}, {t2[h]}")

    def carry_setup(self, st=None):
        k = self.k; st = st or k
        self.cbase = k.V()
        self.sv = k.V(60, 2)
        atomic(st, f"s_sub_u32 s3, {self.s_coff}, 1024\nv_add_u32 {self.cbase}, s3, {self.soff}")

    def carry_loads(self, st):
        for m in range(15):
            a = self.sv[4 * m]
            st(f"v_subrev_u32 {a}, {1024 * m}, {self.cbase}")
            st(f"v_min_u32 {a}, 0x7fff0000, {a}")
            st(f"buffer_load_dwordx4 {self.sv[4 * m:4 * m + 4]}, {a}, {self.srdS}, 0 offen sc0 sc1", "sld")

    def carry_check(self):
        k = self.k; sv = self.sv
        cnt = self._ccnt; ms = self._cms
        k(f"v_mov_b32 {cnt}, 0")
        for b in range(0, 15, 5):
            for m in range(b, b + 5):
                k(f"v_cmp_eq_u64 {ms[2 * (m - b):2 * (m - b) + 2]}, {self.nonce}, {sv[4 * m + 2:4 * m + 4]}")
            for m in range(b, b + 5):
                k(f"v_addc_co_u32 {cnt}, vcc, 0, {cnt}, {ms[2 * (m - b):2 * (m - b) + 2]}")
        k(f"v_cmp_ne_u32 vcc, {self.c}, {cnt}")

    def carry(self, first_loads_issued=False):
        k = self.k; E = k.E
        sv = self.sv
        self._ccnt = k.V(); self._cms = k.S(10, 2)
        cnt = k.S()
        k(f"s_mov_b32 {cnt}, 0")
        if not first_loads_issued: self.carry_loads(k)
        self.carry_check()
        done = E.newlabel("Lpolldone"); lab = E.newlabel("Lpoll")
        k(f"s_cbranch_vccz {done}")
        snap = E.snapshot()
        E.label(lab)
        self.carry_loads(k)
        E.wait_all()
        self.carry_check()
        k(f"s_add_u32 {cnt}, {cnt}, 1")
        k(f"s_cmp_gt_u32 {cnt}, 20000")
        k(f"s_cbranch_scc1 {done}")
        k(f"s_cbranch_vccnz {lab}")
        E.label(done)
        E.restore(snap)
        k("s_nop 4")
        L = self.l128
        H = k.V(2, 2); T = k.V(2, 2)
        cur = sv[56:58]
        for m in range(13, -1, -1):
            z = sv[4 * m:4 * m + 2]
            k(f"v_fma_f32 {T[0]}, -{L[1]}, {cur[1]}, {z[0]}")
            k(f"v_fma_f32 {T[1]}, {L[1]}, {cur[0]}, {z[1]}")
            k(f"v_fma_f32 {z[0]}, {L[0]}, {cur[0]}, {T[0]}")
            k(f"v_fma_f32 {z[1]}, {L[0]}, {cur[1]}, {T[1]}")
            cur = z
        k(f"v_mov_b32 {H[0]}, {cur[0]}\nv_mov_b32 {H[1]}, {cur[1]}")
        self.H = H
        k.v.free(sv, self.cbase, T, self._ccnt, self.soff); k.s.free(cnt, self._cms, self.srdS, self.s_coff)

    def final_scan(self):
        k = self.k
        PP, MM, H = self.PP, self.MM, self.H
        Ir, Ii = k.V(2, 2), k.V(2, 2)
        t1, t2 = self.t1, self.t2
        self.cfma(k, Ir, Ii, MM[0:2], MM[2:4], H, PP[0:2], PP[2:4], t1, t2)
        C = self.coef
        k(f"v_pk_mul_f32 {t1}, {Ii}, {C} op_sel:[0,1] op_sel_hi:[1,1] neg_lo:[0,1] neg_hi:[0,1]")
        k(f"v_pk_mul_f32 {t2}, {Ir}, {C} op_sel:[0,1] op_sel_hi:[1,1]")
        k(f"v_pk_fma_f32 {Ir}, {Ir}, {C}, {t1} {self.BC_LO}")
        k(f"v_pk_fma_f32 {Ii}, {Ii}, {C}, {t2} {self.BC_LO}")
        ae, ao = k.V(), k.V(); t = k.V()
        k(f"v_lshrrev_b32 {t}, 5, {self.lane}")
        k(f"v_lshlrev_b32 {t}, 13, {t}")
        k(f"v_lshl_add_u32 {ae}, {self.ploc}, 2, {t}")
        k(f"s_lshr_b32 s3, {self.w}, 1")
        k(f"s_lshl_b32 s3, s3, 14")
        k(f"s_add_u32 s3, s3, {self.STG}")
        k(f"v_add_u32 {ae}, s3, {ae}")
        k(f"v_xor_b32 {ao}, 16, {ae}")
        pk = [k.V(2, 1), k.V(2, 1)]
        ar, ai = Ir, Ii
        for step in range(16):
            zr, zi = self.zpair(0, step), self.zpair(1, step)
            self.cfma(k, zr, zi, ar, ai, self.lam, zr, zi, t1, t2)
            ar, ai = zr, zi
            if step > 0:
                self._cvt_store(step - 1, pk[step & 1], ae, ao)
        self._cvt_store(15, pk[0], ae, ao)
        k.v.free(Ir, Ii, ae, ao, t, *pk)
        k.v.free(self.PP, self.MM, self.H, self.lam, self.coef, self.l128, self.t1, self.t2)
        for rt in range(2): k.v.free(*self.acc[rt])

    def _cvt_store(self, step, pk, ae, ao):
        k = self.k
        zr, zi = self.zpair(0, step), self.zpair(1, step)
        k(f"v_cvt_pk_bf16_f32 {pk[0]}, {zr[0]}, -{zi[0]}")
        k(f"v_cvt_pk_bf16_f32 {pk[1]}, {zr[1]}, -{zi[1]}")
        k(f"ds_write2st64_b32 {ao if step & 1 else ae}, {pk[0]}, {pk[1]} offset0:{step} offset1:{16 + step}", "stg")

    STG = 0
    def store_h(self, sc=""):
        k = self.k
        srd = k.get_srd("h", "ws", 8 << 20, WS_H)
        ra = k.V(); go = k.V(); t = k.V()
        k(f"v_lshrrev_b32 {t}, 3, {self.lane}")
        k(f"v_and_b32 {ra}, 7, {self.lane}")
        k(f"v_lshlrev_b32 {go}, 4, {ra}")
        k(f"v_lshlrev_b32 {ra}, 5, {ra}")
        k(f"v_lshl_add_u32 {ra}, {t}, 8, {ra}")
        k(f"v_lshl_add_u32 {go}, {t}, 12, {go}")
        k(f"v_and_b32 {t}, 1, {t}")
        k(f"v_lshlrev_b32 {t}, 4, {t}")
        ra2 = k.V()
        k(f"v_xor_b32 {ra2}, 16, {t}")
        k(f"v_add_u32 {ra2}, {ra2}, {ra}")
        k(f"v_add_u32 {ra}, {ra}, {t}")
        k(f"s_lshl_b32 s3, {self.w}, 13")
        k(f"s_add_u32 s3, s3, {self.STG}")
        k(f"v_add_u32 {ra}, s3, {ra}")
        k(f"v_add_u32 {ra2}, s3, {ra2}")
        so = k.S()
        k(f"s_lshl_b32 {so}, {self.c}, 19")
        k(f"s_lshl_b32 s3, {self.w}, 17")
        k(f"s_add_u32 {so}, {so}, s3")
        k(f"s_lshl_b32 s3, {self.g}, 7")
        k(f"s_add_u32 {so}, {so}, s3")
        selr, seli = k.S(), k.S()
        k(f"s_mov_b32 {selr}, 0x05040100\ns_mov_b32 {seli}, 0x07060302")
        d = [k.V(8, 4) for _ in range(4)]
        o = [k.V(8, 4) for _ in range(2)]
        for i in range(4):
            k(f"ds_read_b128 {d[i][0:4]}, {ra} offset:{i * 2048}")
            k(f"ds_read_b128 {d[i][4:8]}, {ra2} offset:{i * 2048}")
        for i in range(4):
            oo = o[i & 1]
            for j in range(4):
                k(f"v_perm_b32 {oo[j]}, {d[i][2 * j + 1]}, {d[i][2 * j]}, {selr}")
            for j in range(4):
                k(f"v_perm_b32 {oo[4 + j]}, {d[i][2 * j + 1]}, {d[i][2 * j]}, {seli}")
            if i: k(f"s_add_u32 {so}, {so}, {8 * 4096}")
            k(f"buffer_store_dwordx4 {oo[0:4]}, {go}, {srd}, {so} offen {sc}", "hst")
            k(f"buffer_store_dwordx4 {oo[4:8]}, {go}, {srd}, {so} offen offset:2048 {sc}", "hst")
        k.v.free(ra, ra2, go, t, *d, *o); k.s.free(so, selr, seli)
        k.v.free(self.ploc); k.s.free(self.mask_hh)
```

```python
from common import *
from prep import hi_mask, lane16


class G2:
    NST = 16
    SLOT = 16384
    NSLOT = 4

    def __init__(self, k, lane, w, tc, dg, ring=0, slot_order=(0, 1, 2, 3), xb=65536, yb=65536 + 16384, sc_in="sc0 sc1"):
        self.k, self.lane, self.w, self.tc, self.dg = k, lane, w, tc, dg
        self.RB, self.XB, self.YB, self.sc_in = ring, xb, yb, sc_in
        self.slot_off = [o * self.SLOT for o in slot_order]

    def setup_c(self, st=None):
        k, lane, w, tc, dg = self.k, self.lane, self.w, self.tc, self.dg
        st = st or k
        r = self.srdC = k.S(4, 4); p = k.ptrs["ws"]
        st(f"s_lshl_b32 s3, {dg}, 2")
        st(f"s_add_u32 s3, s3, {w}")
        st(f"s_lshl_b32 s3, s3, 1")
        t = k.S()
        st(f"s_and_b32 {t}, {tc}, 1")
        st(f"s_add_u32 s3, s3, {t}")
        st(f"s_lshl_b32 s3, s3, 16")
        st(f"s_add_u32 s3, s3, {WS_C}")
        atomic(st, f"s_add_u32 {r[0]}, {p[0]}, s3\ns_addc_u32 {r[1]}, {p[1]}, 0")
        st(f"s_mov_b32 {r[2]}, {64 * 1024}")
        st(f"s_mov_b32 {r[3]}, {SRD3}")
        tfree(k, st, t)
        self.l16 = lane16(k, lane)
        self.cso = k.S(name="cso")
        self.res = [k.A(4, 4) for _ in range(64)]

    def c_load_ops(self, lo=0, hi=64):
        out = []
        for kp in range(lo, hi):
            g = []
            if kp == lo or (kp & 3) == 0: g.append((f"s_mov_b32 {self.cso}, {(kp >> 2) * 4096}", None))
            g.append((f"buffer_load_dwordx4 {self.res[kp]}, {self.l16}, {self.srdC}, {self.cso} offen offset:{(kp & 3) * 1024} {self.sc_in}", f"cf{kp}"))
            out.append(g)
        return out

    def setup(self, st=None):
        k, lane, w, tc, dg = self.k, self.lane, self.w, self.tc, self.dg
        st = st or k
        self.srdH = k.get_srd("h", "ws", 8 << 20, WS_H, st)
        self.voffH = k.V(2, 1)
        row = k.V(); ch = k.V(); t = k.V()
        st(f"v_and_b32 {ch}, 7, {lane}")
        for hf in range(2):
            st(f"v_lshrrev_b32 {row}, 3, {lane}")
            st(f"s_lshl_b32 s3, {w}, 4")
            st(f"s_add_u32 s3, s3, {8 * hf}")
            st(f"v_add_u32 {row}, s3, {row}")
            st(f"v_bfe_u32 {t}, {row}, 1, 3")
            st(f"v_xor_b32 {t}, {t}, {ch}")
            st(f"v_lshlrev_b32 {t}, 4, {t}")
            st(f"s_lshr_b32 s3, {tc}, 1")
            st(f"s_lshl_b32 s3, s3, 7")
            st(f"v_add_u32 {row}, s3, {row}")
            st(f"v_lshl_add_u32 {self.voffH[hf]}, {row}, 12, {t}")
        self.hk = k.S(name="hk"); self.m0b = k.S(name="g2m0")
        self.hb = k.S(2, 1)
        pl = k.S()
        st(f"s_and_b32 {pl}, {tc}, 1")
        st(f"s_lshl_b32 s3, {pl}, 11")
        st(f"s_lshl_b32 {self.hb[1]}, {pl}, 18")
        st(f"s_xor_b32 {self.hb[0]}, {self.hb[1]}, {1 << 18}")
        st(f"s_add_u32 {self.hb[0]}, {self.hb[0]}, s3")
        st(f"s_add_u32 {self.hb[1]}, {self.hb[1]}, s3")
        tfree(k, st, pl)
        st(f"s_lshl_b32 {self.m0b}, {w}, 11")
        if self.RB: st(f"s_add_u32 {self.m0b}, {self.m0b}, {self.RB}")
        self.adA = [k.V() for _ in range(4)]
        st(f"v_and_b32 {row}, 31, {lane}")
        st(f"v_bfe_u32 {ch}, {row}, 1, 3")
        st(f"v_lshrrev_b32 {t}, 5, {lane}")
        st(f"v_xor_b32 {ch}, {ch}, {t}")
        st(f"v_lshlrev_b32 {ch}, 4, {ch}")
        st(f"v_lshl_add_u32 {ch}, {row}, 7, {ch}")
        for kq in range(4):
            st(f"v_xor_b32 {self.adA[kq]}, {32 * kq}, {ch}")
            if self.RB: st(f"v_add_u32 {self.adA[kq]}, {self.RB}, {self.adA[kq]}")
        tfree(k, st, row, ch, t)

    def alloc_main(self):
        k = self.k
        self.fr = [[k.V(4, 4), k.V(4, 4)] for _ in range(2)]
        self.acc = [[k.V(16, 4) for _ in range(2)] for _ in range(2)]

    def dma_ops(self, st):
        so = self.slot_off[st % self.NSLOT]; ops = []
        first = True
        for s in range(2):
            for hf in range(2):
                m0 = so + 8192 * s + 1024 * hf - 128 * s
                g = []
                if first: g.append((f"s_add_u32 {self.hk}, {self.hb[st >> 3]}, {256 * (st & 7)}", None)); first = False
                g += [(f"s_add_u32 m0, {self.m0b}, {m0}" if m0 >= 0 else f"s_sub_u32 m0, {self.m0b}, {-m0}", None),
                      (f"buffer_load_dwordx4 {self.voffH[hf]}, {self.srdH}, {self.hk} offen offset:{128 * s} {self.sc_in} lds", f"g2st{st}")]
                ops.append(g)
        return ops

    def prologue_h(self, lo, hi, st=None):
        st = st or self.k
        for s in range(lo, hi):
            for grp in self.dma_ops(s):
                for t, tag in grp: st(t, tag)

    def frag_reads(self, st, kk):
        s, kq = kk >> 2, kk & 3
        off = self.slot_off[st % self.NSLOT] + 8192 * s
        fs = self.fr[kk & 1]
        return [(f"ds_read_b128 {fs[0]}, {self.adA[kq]} offset:{off}", f"g2fr{st}_{kk}"),
                (f"ds_read_b128 {fs[1]}, {self.adA[kq]} offset:{off + 4096}", f"g2fr{st}_{kk}")]

    def mainloop(self, events=None, prebar=None, npre=3, stamp=None, late=None, nbg=3):
        k = self.k; E = k.E
        events = events or {}; prebar = prebar or {}
        late = list(late or [])
        bg = []
        E.wait_tag("g2st0")
        k("s_barrier")
        for t, tag in self.frag_reads(0, 0): k(t, tag)
        if stamp: stamp("g2_loop_start")
        pend = []
        for s2 in range(npre, self.NSLOT): pend += self.dma_ops(s2)
        for st in range(self.NST):
            bg += list(events.get(st, []))
            if stamp and st in getattr(self, "stamp_at", ()): stamp(f"st{st}")
            for kk in range(8):
                b = self.res[8 * (st & 7) + kk]
                acc = self.acc[st >> 3]
                fs = self.fr[kk & 1]
                pre = [[], []]; fill = [[], []]
                if kk < 7:
                    rd = self.frag_reads(st, kk + 1)
                else:
                    E.wait_tag(f"g2fr{st}_7")
                    if st + 1 < self.NST: E.wait_tag(f"g2st{st + 1}")
                    if st in prebar: prebar[st]()
                    k("s_barrier")
                    rd = self.frag_reads(st + 1, 0) if st + 1 < self.NST else []
                    nxt = st + self.NSLOT
                    if nxt < self.NST: pend += self.dma_ops(nxt)
                fill[0] += rd
                if pend:
                    op = pend.pop(0)
                    pre[1] += op[:-1]; fill[1].append(op[-1])
                elif late:
                    op = late.pop(0)
                    pre[1] += op[:-1]; fill[1].append(op[-1])
                for rt in range(2):
                    for t, tag in pre[rt]: k(t, tag)
                    cin = "0" if (st & 7) == 0 and kk == 0 else f"{acc[rt]}"
                    k(f"v_mfma_f32_32x32x16_bf16 {acc[rt]}, {fs[rt]}, {b}, {cin}")
                    for t, tag in fill[rt]: k(t, tag)
                    n = nbg - len(fill[rt]) - len(pre[rt])
                    for _ in range(max(n, 0)):
                        if bg: emit_op(E, bg.pop(0))
        assert not late
        emit_stream(E, bg)
        if stamp: stamp("g2_loop_end")

    def xch_setup(self, flags, st=None):
        k, lane, w, tc, dg = self.k, self.lane, self.w, self.tc, self.dg
        st = st or k
        self.flags = flags
        self.srdX2 = k.make_srd("xch", "ws", 8 << 20, WS_X, st)
        self.xso = k.S(); self.xsi = k.S(); self.xfo = k.S(); self.xfi = k.S()
        st(f"s_lshl_b32 s3, {dg}, 2")
        st(f"s_add_u32 s3, s3, {w}")
        st(f"s_lshl_b32 {self.xsi}, {tc}, 5")
        st(f"s_add_u32 {self.xsi}, {self.xsi}, s3")
        st(f"s_xor_b32 {self.xso}, {self.xsi}, 32")
        st(f"s_lshl_b32 {self.xfi}, {self.xsi}, 3\ns_add_u32 {self.xfi}, {self.xfi}, {F_X}")
        st(f"s_lshl_b32 {self.xfo}, {self.xso}, 3\ns_add_u32 {self.xfo}, {self.xfo}, {F_X}")
        st(f"s_lshl_b32 {self.xsi}, {self.xsi}, 13")
        st(f"s_lshl_b32 {self.xso}, {self.xso}, 13")
        self.vz = k.V(name="vzero")
        st(f"v_mov_b32 {self.vz}, 0")
        self.xf = k.V(2, 2)
        self.R = [k.V(4, 2) for _ in range(8)]
        self.xs2 = k.S()

    def xch_stores(self, st):
        for q in range(8):
            rt, blk = q >> 2, q & 3
            if (q & 3) == 0: st(f"s_add_u32 {self.xs2}, {self.xso}, {4096 * (q >> 2)}")
            st(f"buffer_store_dwordx4 {self.acc[0][rt][4 * blk:4 * blk + 4]}, {self.l16}, {self.srdX2}, {self.xs2} offen offset:{1024 * (q & 3)} sc0 sc1", "xst")
    def xch_publish(self, st):
        k = self.k
        st.do(lambda E: E.wait_tag("xst"))
        self.flags.publish(st, self.xf, self.vz, self.xfo, "xflag")
    def xch_flag_load(self, st):
        self.flags.load(st, self.xf, self.vz, self.xfi)
    def xch_recv(self, st):
        st.do(lambda E: self.flags.check(self.xf, self.vz, self.xfi))
        for q in range(8):
            if (q & 3) == 0: st(f"s_add_u32 {self.xs2}, {self.xsi}, {4096 * (q >> 2)}")
            st(f"buffer_load_dwordx4 {self.R[q]}, {self.l16}, {self.srdX2}, {self.xs2} offen offset:{1024 * (q & 3)} sc0 sc1", "xld")
    def xch_fold(self, st):
        for i in range(8):
            for r in range(4):
                st(f"v_fmac_f32 {self.O[i][r]}, {self.G[i][r]}, {self.R[i][r]}")

    def epi_setup(self, st=None):
        k, lane, w, tc, dg = self.k, self.lane, self.w, self.tc, self.dg
        st = st or k
        self.srdX = k.get_srd("x", "x", SIZE["x"], 0, st)
        self.srdY = k.get_srd("y", "ws", 4 << 20, WS_Y, st)
        self.srdG = k.get_srd("g", "ws", 16384, WS_G, st)
        self.srdDk = k.get_srd("dskip", "dskip", SIZE["dskip"], 0, st)
        self.srdO = k.get_srd("out", "out", SIZE["out"], 0, st)
        self.hm = hi_mask(k)
        t = k.V(); u = k.V(); c = k.V()
        self.xo = k.V(); self.xs = k.S()
        st(f"v_lshrrev_b32 {t}, 4, {lane}")
        st(f"v_and_b32 {u}, 15, {lane}")
        st(f"v_lshlrev_b32 {c}, 2, {t}")
        st(f"v_xor_b32 {u}, {u}, {c}")
        st(f"v_lshlrev_b32 {u}, 4, {u}")
        st(f"v_lshl_add_u32 {self.xo}, {t}, 11, {u}")
        st(f"s_lshl_b32 {self.xs}, {tc}, 17")
        st(f"s_lshl_b32 s3, {w}, 15")
        st(f"s_add_u32 {self.xs}, {self.xs}, s3")
        st(f"s_lshl_b32 s3, {dg}, 8")
        st(f"s_add_u32 {self.xs}, {self.xs}, s3")
        self.yo = k.V(2, 1); self.ys = k.S()
        for par in range(2):
            st(f"v_lshrrev_b32 {t}, 4, {lane}")
            if par: st(f"v_add_u32 {t}, 4, {t}")
            st(f"v_and_b32 {u}, 7, {lane}")
            st(f"v_xor_b32 {u}, {u}, {t}")
            st(f"v_lshlrev_b32 {u}, 4, {u}")
            st(f"v_lshrrev_b32 {t}, 3, {lane}")
            st(f"v_lshl_add_u32 {self.yo[par]}, {t}, 12, {u}")
        st(f"s_lshl_b32 {self.ys}, {dg}, 19")
        st(f"s_lshl_b32 s3, {w}, 17")
        st(f"s_add_u32 {self.ys}, {self.ys}, s3")
        st(f"s_lshl_b32 s3, {tc}, 7")
        st(f"s_add_u32 {self.ys}, {self.ys}, s3")
        self.xa = k.V()
        r = k.V()
        st(f"v_bfe_u32 {r}, {lane}, 2, 2")
        st(f"v_bfe_u32 {t}, {lane}, 4, 1")
        st(f"v_lshlrev_b32 {t}, 1, {t}")
        st(f"v_bfe_u32 {u}, {lane}, 1, 1")
        st(f"v_add_u32 {t}, {t}, {u}")
        st(f"s_lshl_b32 s3, {w}, 2")
        st(f"v_add_u32 {t}, s3, {t}")
        st(f"v_lshlrev_b32 {u}, 2, {r}")
        st(f"v_xor_b32 {t}, {t}, {u}")
        st(f"v_lshlrev_b32 {t}, 4, {t}")
        st(f"v_and_b32 {u}, 1, {lane}")
        st(f"v_lshl_add_u32 {t}, {u}, 3, {t}")
        st(f"v_lshrrev_b32 {u}, 5, {lane}")
        st(f"v_lshl_add_u32 {r}, {u}, 2, {r}")
        st(f"v_lshl_add_u32 {t}, {r}, 8, {t}")
        st(f"v_add_u32 {self.xa}, {self.XB}, {t}")
        self.ya = k.V()
        st(f"v_and_b32 {t}, 31, {lane}")
        st(f"v_bfe_u32 {c}, {t}, 1, 3")
        st(f"v_lshlrev_b32 {c}, 4, {c}")
        st(f"v_lshl_add_u32 {c}, {t}, 7, {c}")
        st(f"v_lshrrev_b32 {u}, 5, {lane}")
        st(f"v_lshl_add_u32 {c}, {u}, 3, {c}")
        st(f"s_lshl_b32 s3, {w}, 12")
        st(f"s_add_u32 s3, s3, {self.YB}")
        st(f"v_add_u32 {self.ya}, s3, {c}")
        self.go = k.V()
        st(f"v_lshlrev_b32 {u}, 4, {u}")
        st(f"s_lshl_b32 s3, {tc}, 8")
        st(f"v_add_u32 {self.go}, s3, {u}")
        self.dko = k.V(); self.oo = k.V(); self.os = k.S()
        st(f"v_and_b32 {t}, 31, {lane}")
        st(f"s_lshl_b32 s3, {dg}, 7")
        st(f"v_add_u32 {t}, s3, {t}")
        st(f"s_lshl_b32 s3, {w}, 5")
        st(f"v_add_u32 {t}, s3, {t}")
        st(f"v_lshlrev_b32 {self.dko}, 1, {t}")
        st(f"v_lshrrev_b32 {u}, 5, {lane}")
        st(f"v_lshlrev_b32 {u}, 14, {u}")
        st(f"v_lshl_add_u32 {self.oo}, {t}, 2, {u}")
        st(f"s_lshl_b32 {self.os}, {tc}, 18")
        tfree(k, st, t, u, c, r)
        self.m0x = k.S()

    def epi_x_dma(self, st):
        k = self.k
        st(f"s_lshl_b32 {self.m0x}, {self.w}, 12")
        for i in range(4):
            atomic(st, f"s_add_u32 m0, {self.m0x}, {self.XB + 1024 * i}\n"
                       f"buffer_load_dwordx4 {self.xo}, {self.srdX}, {self.xs} offen lds", "xdma")
            if i < 3: st(f"s_add_u32 {self.xs}, {self.xs}, {4 * 2048}")
    def epi_y_dma(self, st):
        st(f"s_lshl_b32 {self.m0x}, {self.w}, 12")
        for i in range(4):
            atomic(st, f"s_add_u32 m0, {self.m0x}, {self.YB + 1024 * i}\n"
                       f"buffer_load_dwordx4 {self.yo[i & 1]}, {self.srdY}, {self.ys} offen {self.sc_in} lds", "ydma")
            if i < 3: st(f"s_add_u32 {self.ys}, {self.ys}, {8 * 4096}")

    def epi_alloc(self):
        k = self.k
        self.G = [k.V(4, 2) for _ in range(8)]
        self.O = [k.V(4, 2) for _ in range(8)]
        self.dk = k.V()
        self.ex = [k.V(2, 2) for _ in range(2)]; self.ey = [k.V(2, 2) for _ in range(2)]
        self.et = k.V(8, 1); self.eya = k.V()

    def epi_small_loads(self, st):
        st(f"buffer_load_ushort {self.dk}, {self.dko}, {self.srdDk}, 0 offen")
        for i in range(8):
            off = (32 * (i >> 2) + 8 * (i & 3)) * 4
            st(f"buffer_load_dwordx4 {self.G[i]}, {self.go}, {self.srdG}, 0 offen offset:{off} {self.sc_in}")
            st(f"s_nop 0")
        st(f"v_add_u32 {self.eya}, 8192, {self.go}")
        for i in range(8):
            off = (32 * (i >> 2) + 8 * (i & 3)) * 4
            st(f"buffer_load_dwordx4 {self.O[i]}, {self.eya}, {self.srdG}, 0 offen offset:{off} {self.sc_in}")

    def epi_pre(self, st):
        t = self.et
        st(f"v_lshlrev_b32 {self.dk}, 16, {self.dk}")
        for i in range(8):
            rt, blk = i >> 2, i & 3
            ex, ey = self.ex[i & 1], self.ey[i & 1]
            st(f"ds_read_b64_tr_b16 {ex}, {self.xa} offset:{(32 * rt + 8 * blk) * 256}")
            st(f"v_xor_b32 {self.eya}, {16 * i}, {self.ya}")
            st(f"ds_read_b64 {ey}, {self.eya}")
            G, O = self.G[i], self.O[i]
            for r in range(4):
                sh = (lambda d, s: f"v_and_b32 {d}, {self.hm}, {s}") if r & 1 else (lambda d, s: f"v_lshlrev_b32 {d}, 16, {s}")
                st(sh(t[r], ey[r >> 1]))
                st(sh(t[4 + r], ex[r >> 1]))
            for r in range(4): st(f"v_mul_f32 {O[r]}, {O[r]}, {t[r]}")
            for r in range(4): st(f"v_fmac_f32 {O[r]}, {G[r]}, {self.dk}")
            for r in range(4): st(f"v_mul_f32 {O[r]}, {O[r]}, {t[4 + r]}")

    def epi_final(self):
        k = self.k
        for i in range(8):
            rt, blk = i >> 2, i & 3
            for r in range(4):
                a = self.acc[1][rt][4 * blk + r]
                k(f"v_fma_f32 {a}, {self.G[i][r]}, {a}, {self.O[i][r]}")
        for i in range(8):
            rt, blk = i >> 2, i & 3
            for r in range(4):
                a = self.acc[1][rt][4 * blk + r]
                row = 32 * rt + 8 * blk + r
                k(f"s_add_u32 s3, {self.os}, {row * 4096}")
                k(f"buffer_store_dword {a}, {self.oo}, {self.srdO}, s3 offen", "ost")
```

```python
from common import *

LOG2E = 0x3fb8aa3b


def tile2_ids(k):
    tc = k.S(name="tc"); dg = k.S(name="dg"); t = k.S()
    k(f"s_and_b32 {t}, s2, 7")
    k(f"s_lshr_b32 {tc}, {t}, 1")
    k(f"s_lshl_b32 {tc}, {tc}, 3")
    k(f"s_and_b32 {dg}, {t}, 1")
    k(f"s_lshl_b32 {dg}, {dg}, 2")
    k(f"s_lshr_b32 {t}, s2, 3")
    k(f"s_and_b32 s3, {t}, 7")
    k(f"s_add_u32 {tc}, {tc}, s3")
    k(f"s_lshr_b32 {t}, {t}, 3")
    k(f"s_add_u32 {dg}, {dg}, {t}")
    k.s.free(t)
    return tc, dg


def lane16(k, lane):
    if not hasattr(k, "l16"):
        k.l16 = k.V(name="l16")
        k(f"v_lshlrev_b32 {k.l16}, 4, {lane}")
    return k.l16


def hi_mask(k):
    if not hasattr(k, "himask"):
        k.himask = k.S(name="himask")
        k(f"s_mov_b32 {k.himask}, 0xffff0000")
    return k.himask


class PrepKV:
    def __init__(self, k, lane, w, c, g, lds_base, sc="sc0 sc1"):
        self.k, self.lane, self.w, self.c, self.g, self.PB, self.sc = k, lane, w, c, g, lds_base, sc

    def setup(self):
        k, lane, w, c, g = self.k, self.lane, self.w, self.c, self.g
        self.srdK = k.get_srd("k", "k", SIZE["k"])
        self.srdV = k.get_srd("v", "v", SIZE["v"])
        self.srdW = k.get_srd("shk", "shk", SIZE["shk"])
        self.srdU = k.get_srd("u", "ws", 4 << 20, WS_U)
        self.hm = hi_mask(k)
        dc = k.V(); tg = k.V(); t = k.V()
        self.vk = k.V(); self.vh = k.V(3, 1); self.vw = k.V()
        k(f"v_and_b32 {dc}, 7, {lane}")
        k(f"v_lshrrev_b32 {tg}, 3, v0")
        k(f"s_lshl_b32 s3, {g}, 7")
        k(f"v_lshl_add_u32 {t}, {dc}, 4, s3")
        k(f"s_lshl_b32 s3, {c}, 18")
        k(f"v_lshl_add_u32 {self.vk}, {tg}, 13, {t}")
        k(f"v_add_u32 {self.vk}, s3, {self.vk}")
        for i in range(3):
            k(f"v_subrev_u32 {self.vh[i]}, {2048 * (3 - i)}, {self.vk}")
            k(f"v_min_u32 {self.vh[i]}, 0x7fff0000, {self.vh[i]}")
        k(f"v_lshlrev_b32 {self.vw}, 2, {t}")
        self.s4096 = k.S()
        k(f"s_mov_b32 {self.s4096}, 4096")
        self.wa = k.V()
        k(f"v_sub_u32 {tg}, 31, {tg}")
        k(f"v_lshlrev_b32 {t}, 1, {dc}")
        k(f"v_xor_b32 {tg}, {tg}, {t}")
        k(f"v_lshlrev_b32 {tg}, 3, {tg}")
        k(f"v_lshl_add_u32 {self.wa}, {dc}, 11, {tg}")
        k(f"v_add_u32 {self.wa}, {self.PB}, {self.wa}")
        self.ra = k.V(2, 1); self.go = k.V()
        v = k.V()
        k(f"v_and_b32 {v}, 15, {lane}")
        k(f"v_lshrrev_b32 {t}, 4, {lane}")
        k(f"s_lshl_b32 s3, {w}, 1")
        for hi in range(2):
            k(f"v_xor_b32 {tg}, s3, {v}")
            if hi: k(f"v_xor_b32 {tg}, 1, {tg}")
            k(f"v_lshlrev_b32 {tg}, 4, {tg}")
            k(f"v_lshl_add_u32 {self.ra[hi]}, {t}, 8, {tg}")
        k(f"s_lshl_b32 s3, {w}, 12")
        k(f"s_add_u32 s3, s3, {self.PB}")
        k(f"v_add_u32 {self.ra[0]}, s3, {self.ra[0]}")
        k(f"s_add_u32 s3, s3, 2048")
        k(f"v_add_u32 {self.ra[1]}, s3, {self.ra[1]}")
        k(f"v_lshlrev_b32 {v}, 4, {v}")
        k(f"v_lshl_add_u32 {self.go}, {t}, 12, {v}")
        self.so = k.S()
        k(f"s_lshl_b32 {self.so}, {g}, 18")
        k(f"s_lshl_b32 s3, {w}, 16")
        k(f"s_add_u32 {self.so}, {self.so}, s3")
        k(f"s_add_u32 {self.so}, {self.so}, 3840")
        k(f"s_lshl_b32 s3, {c}, 8")
        k(f"s_sub_u32 {self.so}, {self.so}, s3")
        k.v.free(dc, tg, t, v)
        self.kr = [k.V(4, 2) for _ in range(7)]
        self.vr = [k.V(4, 2) for _ in range(4)]
        self.wr = [k.V(4, 2) for _ in range(4)]
        self.tmp = [dict(w=k.V(4, 1), kk=k.V(7, 1), u=k.V(4, 1), t=k.V(), p=k.V(2, 2)) for _ in range(1)]

    def loads(self, st):
        for j in range(4):
            st(f"buffer_load_dwordx4 {self.wr[j]}, {self.vw}, {self.srdW}, 0 offen offset:{16 * j}")
        for i in range(7):
            if i < 3: st(f"buffer_load_dwordx4 {self.kr[i]}, {self.vh[i]}, {self.srdK}, 0 offen")
            else:
                r = i - 3
                so = "0" if r < 2 else self.s4096
                st(f"buffer_load_dwordx4 {self.kr[i]}, {self.vk}, {self.srdK}, {so} offen offset:{2048 * (r & 1)}")
        for r in range(4):
            so = "0" if r < 2 else self.s4096
            st(f"buffer_load_dwordx4 {self.vr[r]}, {self.vk}, {self.srdV}, {so} offen offset:{2048 * (r & 1)}")

    def free_in_srds(self):
        self.k.free_srd("k", "v", "shk")

    def unpack(self, st, dst, src, hi):
        if hi: st(f"v_and_b32 {dst}, {self.hm}, {src}")
        else: st(f"v_lshlrev_b32 {dst}, 16, {src}")

    def compute(self, st):
        T = self.tmp[0]
        W, KK, U, t, P = T["w"], T["kk"], T["u"], T["t"], T["p"]
        for e in range(8):
            d0 = self.wr[(2 * e) >> 2][(2 * e) & 3]; d1 = self.wr[(2 * e + 1) >> 2][(2 * e + 1) & 3]
            self.unpack(st, W[0], d0, 0); self.unpack(st, W[1], d0, 1)
            self.unpack(st, W[2], d1, 0); self.unpack(st, W[3], d1, 1)
            for i in range(7):
                self.unpack(st, KK[i], self.kr[i][e >> 1], e & 1)
            for r in range(4):
                st(f"v_mul_f32 {U[r]}, {W[3]}, {KK[r]}")
            for j in (2, 1, 0):
                for r in range(4):
                    st(f"v_fmac_f32 {U[r]}, {W[j]}, {KK[r + 3 - j]}")
            for r in range(4):
                self.unpack(st, KK[r], self.vr[r][e >> 1], e & 1)
            for r in range(4):
                st(f"v_mul_f32 {U[r]}, {U[r]}, {KK[r]}")
            st(f"v_cvt_pk_bf16_f32 {P[0]}, {U[3]}, {U[2]}")
            st(f"v_cvt_pk_bf16_f32 {P[1]}, {U[1]}, {U[0]}")
            st(f"ds_write_b64 {self.wa}, {P} offset:{256 * e}", "kvw")

    def store(self, st):
        d = self.kr[:4]
        for i in range(4):
            st(f"ds_read_b128 {d[i]}, {self.ra[i >> 1]} offset:{1024 * (i & 1)}")
        for i in range(4):
            if i: st(f"s_add_u32 {self.so}, {self.so}, {4 * 4096}")
            st(f"buffer_store_dwordx4 {d[i]}, {self.go}, {self.srdU}, {self.so} offen {self.sc}", "ust")

    def free(self):
        k = self.k
        T = self.tmp[0]
        k.v.free(self.vk, self.vh, self.vw, self.wa, self.ra, self.go, *self.kr, *self.vr, *self.wr,
                 T["w"], T["kk"], T["u"], T["t"], T["p"])
        k.s.free(self.s4096, self.so)


class PrepC:
    def __init__(self, k, lane, w, tc, dg, sc="sc0 sc1", agpr=False):
        self.k, self.lane, self.w, self.tc, self.dg, self.sc = k, lane, w, tc, dg, sc
        self.agpr = agpr
    def setup(self):
        k, lane, w, tc, dg = self.k, self.lane, self.w, self.tc, self.dg
        r = k.S(4, 4); self.srd = r
        pre, pim = k.ptrs["cre"], k.ptrs["cim"]
        k(f"s_cmp_lt_u32 {tc}, 16")
        k(f"s_cselect_b32 {r[0]}, {pre[0]}, {pim[0]}")
        k(f"s_cselect_b32 {r[1]}, {pre[1]}, {pim[1]}")
        k(f"s_mov_b32 {r[2]}, {SIZE['cre']}")
        k(f"s_mov_b32 {r[3]}, {SRD3}")
        k.free_ptrs("cre", "cim")
        self.srdD = k.make_srd("cf", "ws", 4 << 20, WS_C)
        self.src = k.V(); self.dst = k.V(); t = k.V(); ch = k.V()
        k(f"v_lshrrev_b32 {t}, 3, {lane}")
        k(f"v_and_b32 {ch}, 7, {lane}")
        k(f"v_lshlrev_b32 {self.src}, 4, {ch}")
        k(f"v_lshl_add_u32 {self.src}, {t}, 11, {self.src}")
        k(f"v_lshlrev_b32 {self.dst}, 4, {t}")
        k(f"v_lshl_add_u32 {self.dst}, {ch}, 9, {self.dst}")
        k.v.free(t, ch)
        self.ss = k.S(); self.sd = k.S()
        k(f"s_lshl_b32 {self.ss}, {dg}, 18")
        k(f"s_lshl_b32 s3, {w}, 16")
        k(f"s_add_u32 {self.ss}, {self.ss}, s3")
        k(f"s_and_b32 s3, {tc}, 15")
        k(f"s_lshl_b32 s3, s3, 7")
        k(f"s_add_u32 {self.ss}, {self.ss}, s3")
        k(f"s_lshl_b32 {self.sd}, {dg}, 19")
        k(f"s_lshl_b32 s3, {w}, 17")
        k(f"s_add_u32 {self.sd}, {self.sd}, s3")
        k(f"s_lshl_b32 s3, {tc}, 12")
        k(f"s_add_u32 {self.sd}, {self.sd}, s3")
        self.d = [(k.A(4, 4) if self.agpr else k.V(4, 2)) for _ in range(4)]
    def loads(self, st):
        for i in range(4):
            if i: st(f"s_add_u32 {self.ss}, {self.ss}, {8 * 2048}")
            st(f"buffer_load_dwordx4 {self.d[i]}, {self.src}, {self.srd}, {self.ss} offen")
    def stores(self, st):
        for i in range(4):
            st(f"buffer_store_dwordx4 {self.d[i]}, {self.dst}, {self.srdD}, {self.sd} offen offset:{128 * i} {self.sc}", "cst")
    def free(self):
        k = self.k
        k.v.free(self.src, self.dst); k.s.free(self.ss, self.sd, self.srd)
        (k.a if self.agpr else k.v).free(*self.d)
        k.free_srd("cf")


class PrepGate:
    def __init__(self, k, lane, w, c, g, sc="sc0 sc1"):
        self.k, self.lane, self.w, self.c, self.g, self.sc = k, lane, w, c, g, sc
    def setup(self):
        k, lane, w, c, g = self.k, self.lane, self.w, self.c, self.g
        self.srdX = k.get_srd("x", "x", SIZE["x"])
        self.srdW = k.get_srd("gw", "gw", SIZE["gw"])
        self.srdG = k.get_srd("g", "ws", 16384, WS_G)
        self.hm = hi_mask(k)
        self.off = lane16(k, lane); self.st_ = k.S(); self.go = k.V()
        k(f"s_lshl_b32 {self.st_}, {c}, 7")
        k(f"s_lshl_b32 s3, {g}, 3")
        k(f"s_add_u32 {self.st_}, {self.st_}, s3")
        k(f"s_lshl_b32 s3, {w}, 1")
        k(f"s_add_u32 {self.st_}, {self.st_}, s3")
        k(f"s_lshl_b32 s3, {self.st_}, 2")
        k(f"v_mov_b32 {self.go}, s3")
        k(f"s_lshl_b32 {self.st_}, {self.st_}, 11")
        self.sv = k.S(2, 2); self.s8k = k.S()
        k(f"s_mov_b32 {self.s8k}, 8192")
    def alloc(self):
        k = self.k
        self.x = [k.V(4, 2) for _ in range(4)]; self.wv = [k.V(4, 2) for _ in range(2)]
        self.acc = k.V(2, 2); self.t = k.V(4, 1); self.om = k.V(2, 2)
    def loads(self, st):
        for h in range(2):
            st(f"buffer_load_dwordx4 {self.wv[h]}, {self.off}, {self.srdW}, 0 offen offset:{1024 * h}")
        for r in range(2):
            for h in range(2):
                st(f"buffer_load_dwordx4 {self.x[2 * r + h]}, {self.off}, {self.srdX}, {self.st_} offen offset:{2048 * r + 1024 * h}")
    def compute(self, st):
        t, acc, hm = self.t, self.acc, self.hm
        first = True
        for h in range(2):
            for j in range(4):
                st(f"v_lshlrev_b32 {t[0]}, 16, {self.wv[h][j]}")
                st(f"v_and_b32 {t[1]}, {hm}, {self.wv[h][j]}")
                for r in range(2):
                    st(f"v_lshlrev_b32 {t[2]}, 16, {self.x[2 * r + h][j]}")
                    st(f"v_and_b32 {t[3]}, {hm}, {self.x[2 * r + h][j]}")
                    if first: st(f"v_mul_f32 {acc[r]}, {t[0]}, {t[2]}")
                    else: st(f"v_fmac_f32 {acc[r]}, {t[0]}, {t[2]}")
                    st(f"v_fmac_f32 {acc[r]}, {t[1]}, {t[3]}")
                first = False
        for ctl in ("row_shr:1", "row_shr:2", "row_shr:4", "row_shr:8"):
            for r in range(2):
                st(f"v_add_f32_dpp {acc[r]}, {acc[r]}, {acc[r]} {ctl} row_mask:0xf bank_mask:0xf bound_ctrl:0")
        for ctl in ("row_bcast:15 row_mask:0xa", "row_bcast:31 row_mask:0xc"):
            for r in range(2):
                st(f"v_add_f32_dpp {acc[r]}, {acc[r]}, {acc[r]} {ctl} bank_mask:0xf")
        st(f"v_cvt_pk_bf16_f32 {t[0]}, {acc[0]}, {acc[1]}")
        st(f"v_lshlrev_b32 {acc[0]}, 16, {t[0]}")
        st(f"v_and_b32 {acc[1]}, {hm}, {t[0]}")
        for r in range(2): st(f"v_mul_f32 {acc[r]}, 0xbfb8aa3b, {acc[r]}")
        for r in range(2): st(f"v_exp_f32 {acc[r]}, {acc[r]}")
        for r in range(2): st(f"v_add_f32 {acc[r]}, 1.0, {acc[r]}")
        for r in range(2): st(f"v_rcp_f32 {acc[r]}, {acc[r]}")
        st(f"v_cvt_pk_bf16_f32 {t[0]}, {acc[0]}, {acc[1]}")
        st(f"v_lshlrev_b32 {acc[0]}, 16, {t[0]}")
        st(f"v_and_b32 {acc[1]}, {hm}, {t[0]}")
        om = self.om
        for r in range(2): st(f"v_sub_f32 {om[r]}, 1.0, {acc[r]}")
        st(f"v_cvt_pk_bf16_f32 {t[0]}, {om[0]}, {om[1]}")
        st(f"v_lshlrev_b32 {om[0]}, 16, {t[0]}")
        st(f"v_and_b32 {om[1]}, {hm}, {t[0]}")
    def store(self, st):
        def f(E):
            sv = self.sv
            E(f"s_mov_b64 {sv}, exec")
            E(f"s_mov_b32 exec_lo, 0")
            E(f"s_mov_b32 exec_hi, 0x80000000")
            E(f"buffer_store_dwordx2 {self.acc}, {self.go}, {self.srdG}, 0 offen {self.sc}", "gst")
            E(f"buffer_store_dwordx2 {self.om}, {self.go}, {self.srdG}, {self.s8k} offen {self.sc}", "gst")
            E(f"s_mov_b64 exec, {sv}")
        if hasattr(st, "do"): st.do(f)
        else: f(st)
    def free(self):
        k = self.k
        k.v.free(self.go, *self.x, *self.wv, self.acc, self.t, self.om); k.s.free(self.st_, self.sv, self.s8k)
        k.free_srd("gw")
```

```python
import sys
from g1 import *
from prep import *
from conv import *
from g2 import *

L_PB = 138240
L_STG = 84992
L_G2 = 98304
LDS_BYTES = 163840


def build(name=KNAME, stamps=(), opt=None):
    opt = opt or {}
    k = K(name, nv=256, na=256)
    E = k.E
    k("s_cmp_ge_u32 s2, 256")
    k("s_cbranch_scc1 Lend_" + name)
    k.load_ptrs(["ws", "bre", "bim"])
    for n in ("x", "lre", "lim", "logdt"): k.make_srd(n, n, SIZE[n])
    k.make_srd("dbg", "dbg", 256)
    for n in ("k", "v", "shk"): k.make_srd(n, n, SIZE[n])
    lane, w = wave_ids(k)
    c, g = tile_ids(k); tc, dg = tile2_ids(k)
    ST = Stamps(k, bool(stamps), len(stamps))
    def st(nm):
        if nm in stamps: ST(nm)
    st("start")
    l16 = lane16(k, lane); hm = hi_mask(k)
    vz = k.V(name="vz"); k(f"v_mov_b32 {vz}, 0")

    G = G1(k, lane, w, c, g, st)
    G.setup_dma()
    G.prologue_loads()
    N = Nonce(k, w); N.publish()
    G.params_load()
    P = PrepKV(k, lane, w, c, g, L_PB)
    P.setup(); P.loads(k); P.free_in_srds()
    k.load_ptrs(["cre", "cim", "ssk"])
    for n in ("gw", "ssd"): k.make_srd(n, n, SIZE[n])
    G.setup_frag()
    G.ebuf_zero(k)
    G.params_compute(k)
    G.params_free_tmp(); G.ebuf_zero_free()
    C = PrepC(k, lane, w, tc, dg, agpr=True); C.setup()
    GT = PrepGate(k, lane, w, c, g); GT.setup()
    CV = Conv(k, lane, w, tc, dg, 0); CV.setup()
    F = Flags(k, N.n)
    s_pu = k.S(); s_pc = k.S()
    k(f"s_lshl_b32 {s_pu}, {g}, 2\ns_add_u32 {s_pu}, {s_pu}, {w}\ns_lshl_b32 {s_pu}, {s_pu}, 4\ns_add_u32 {s_pu}, {s_pu}, {c}")
    k(f"s_lshl_b32 {s_pu}, {s_pu}, 3\ns_add_u32 {s_pu}, {s_pu}, {F_PU}")
    k(f"s_lshl_b32 {s_pc}, {dg}, 2\ns_add_u32 {s_pc}, {s_pc}, {w}\ns_lshl_b32 {s_pc}, {s_pc}, 5\ns_add_u32 {s_pc}, {s_pc}, {tc}")
    k(f"s_lshl_b32 {s_pc}, {s_pc}, 3\ns_add_u32 {s_pc}, {s_pc}, {F_PC}")
    vpoll = k.V(); t0 = k.V(); sa = k.S(); sb = k.S()
    k(f"s_lshl_b32 {sa}, {dg}, 1\ns_lshr_b32 s3, {tc}, 4\ns_add_u32 {sa}, {sa}, s3")
    k(f"s_lshl_b32 {sa}, {sa}, 2\ns_and_b32 s3, {tc}, 15\ns_lshr_b32 s3, s3, 2\ns_add_u32 {sa}, {sa}, s3")
    k(f"s_lshl_b32 {sa}, {sa}, 7\ns_add_u32 {sa}, {sa}, {F_PU}")
    k(f"s_lshl_b32 {sb}, {dg}, 2\ns_add_u32 {sb}, {sb}, {w}\ns_lshl_b32 {sb}, {sb}, 1\ns_and_b32 s3, {tc}, 1\ns_add_u32 {sb}, {sb}, s3")
    k(f"s_lshl_b32 {sb}, {sb}, 7\ns_add_u32 {sb}, {sb}, {F_PC}")
    k(f"v_and_b32 {t0}, 16, {lane}")
    k(f"v_cmp_eq_u32 vcc, 0, {t0}")
    k(f"v_mov_b32 {t0}, {sb}")
    k(f"v_mov_b32 {vpoll}, {sa}")
    k(f"v_cndmask_b32 {vpoll}, {t0}, {vpoll}, vcc")
    k(f"v_and_b32 {t0}, 15, {lane}")
    k(f"v_lshl_add_u32 {vpoll}, {t0}, 3, {vpoll}")
    k.v.free(t0); k.s.free(sa, sb)
    fv = k.V(2, 2, "fv")

    ev = {}
    def S(x):
        return ev.setdefault(x, Stream())
    kv0 = opt.get("kv0", 3)
    C.loads(S(kv0))
    P.compute(S(kv0))
    kv1 = opt.get("kv1", 9)
    P.store(S(kv1 + 0.5))
    P.free()
    GT.alloc(); CV.k_alloc(S(kv1 + 0.5))
    GT.loads(S(kv1 + 0.5))
    CV.k_loads(S(kv1 + 0.5))
    C.stores(S(kv1 + 0.5))
    N.load(S(kv1 + 0.5))
    GT.compute(S(kv1 + 3)); GT.store(S(kv1 + 3))
    s12 = S(opt.get("pub", 13))
    s12.do(lambda E: N.get())
    s12.do(lambda E: E.wait_tag("ust", "cst"))
    F.publish(s12, fv, vz, s_pu, "pubf"); F.publish(s12, fv, vz, s_pc, "pubf")
    F.load(S(14), fv, vpoll)
    s15 = S(14.5)
    CV.k_build(s15)
    prebar = {kv1: (lambda: E.wait_tag("kvw"))}
    G.stamp_at = range(16)
    G.mainloop(events=ev, prebar=prebar, nslot=opt.get("nslot1", 5))
    if G.bg_left: print("G1 background ops left over:", G.bg_left)
    G.free_loop()
    C.free(); GT.free(); CV.k_free()
    k.s.free(s_pu, s_pc)
    k.free_srd("x", "dbg")

    G2_ = G2(k, lane, w, tc, dg, ring=L_G2, slot_order=(2, 3, 0, 1), xb=0, yb=16384)
    G.STG = L_STG
    F.check(fv, vpoll)
    st("pflags")
    CV.u_dma(k, "sc0 sc1")
    G2_.setup_c()
    cl = G2_.c_load_ops()
    G.horner()
    E.wait_all(vm=False)
    k("s_barrier")
    G.combine()
    G.publish_S(N.n)
    st("published")
    k.v.free(vpoll)

    nc1 = opt.get("nc1", 24)
    b1 = Stream()
    G.carry_setup(b1)
    sz = Stream(); G.scale_z_plain(sz)
    mix = []
    szl = list(sz)
    per = max(len(szl) // nc1, 1)
    for i in range(nc1):
        mix += cl[i]
        mix += szl[i * per:(i + 1) * per] if i < nc1 - 1 else szl[i * per:]
    b1 += mix
    G.carry_loads(b1)
    E.wait_tag("kcw", "udma")
    CV.u_free()
    if opt.get("dbg"): print("before conv1 free", k.v.nfree(), k.v.used_map())
    CV.groups(range(0, 4), bg=b1, npool=opt.get("np1", 13), per_slot=opt.get("ps1", 2))
    b1.release(k)
    st("conv1")

    G.carry(first_loads_issued=True)
    st("carry")
    G.final_scan()
    E.wait_all(vm=False)
    k("s_barrier")
    G.store_h("sc0 sc1")
    st("hstored")

    b2 = Stream()
    s_hf = k.S(); vh = k.V(); s_yf = k.S()
    b2(f"s_lshl_b32 {s_hf}, {c}, 4\ns_add_u32 {s_hf}, {s_hf}, {g}\ns_lshl_b32 {s_hf}, {s_hf}, 2\ns_add_u32 {s_hf}, {s_hf}, {w}")
    b2(f"s_lshl_b32 {s_hf}, {s_hf}, 3\ns_add_u32 {s_hf}, {s_hf}, {F_H}")
    b2(f"s_lshl_b32 {s_yf}, {dg}, 5\ns_add_u32 {s_yf}, {s_yf}, {tc}\ns_lshl_b32 {s_yf}, {s_yf}, 2\ns_add_u32 {s_yf}, {s_yf}, {w}")
    b2(f"s_lshl_b32 {s_yf}, {s_yf}, 3\ns_add_u32 {s_yf}, {s_yf}, {F_Y}")
    b2(f"s_lshr_b32 s3, {tc}, 1\ns_lshl_b32 s3, s3, 9\ns_add_u32 s3, s3, {F_H}")
    b2(f"v_lshrrev_b32 {vh}, 1, {l16}\nv_add_u32 {vh}, s3, {vh}")
    G2_.setup(b2)
    nc2 = opt.get("nc2", 24)
    na = opt.get("nc2a", 10)
    for grp in cl[nc1:nc1 + na]: b2 += grp
    b2.do(lambda E: E.wait_tag("hst", "gst"))
    F.publish(b2, fv, vz, s_hf, "hflag")
    for grp in cl[nc1 + na:nc1 + nc2]: b2 += grp
    F.load(b2, fv, vh)
    CV.groups(range(4, 8), bg=b2, per_slot=opt.get("ps2", 1))
    b2.release(k)
    st("conv2")
    F.check(fv, vh)
    k.v.free(vh); k.s.free(s_hf)
    G2_.prologue_h(0, 2)
    st("hflags")
    CV.epilogue(); CV.epilogue_free()
    k.s.free(CV.d, CV.rowoff)
    k.free_srd("u")

    G2_.alloc_main()
    k.make_srd("x", "x", SIZE["x"])
    for n in ("dskip", "out"): k.make_srd(n, n, SIZE[n])
    G2_.xch_setup(F)
    G2_.epi_setup(); G2_.epi_alloc()
    vy = k.V(); fy = k.V(4, 2)
    k(f"s_lshl_b32 s3, {dg}, 10\ns_add_u32 s3, s3, {F_Y}\nv_add_u32 {vy}, s3, {l16}")
    e2 = {s: Stream() for s in range(16)}
    G2_.epi_x_dma(e2[1])
    e2[2].do(lambda E: E.wait_tag("yst"))
    F.publish(e2[2], fv, vz, s_yf, "yflag")
    F.load(e2[5], fy, vy)
    e2[6].do(lambda E: F.check(fy, vy))
    G2_.epi_y_dma(e2[6]); G2_.epi_small_loads(e2[6])
    G2_.xch_stores(e2[8])
    G2_.xch_publish(e2[10])
    G2_.epi_pre(e2[10])
    G2_.xch_flag_load(e2[12])
    G2_.xch_recv(e2[13])
    G2_.xch_fold(e2[15])
    G2_.stamp_at = range(16)
    G2_.mainloop(events=e2, npre=2, stamp=st, late=cl[nc1 + nc2:],
                 prebar={9: (lambda: E.wait_tag("xdma", "ydma"))})
    G2_.epi_final()
    st("stored")
    if stamps:
        E.wait_all()
        st("drained")
        ST.flush(0)
    E.label("Lend_" + name)
    k("s_endpgm")
    return k, ST


if __name__ == "__main__":
    args = sys.argv[1:]
    out = [a for a in args if a.endswith(".s")]
    stamps = ()
    opt = {}
    for a in args:
        if a.startswith("st="): stamps = tuple(a[3:].split(","))
        elif "=" in a and not a.endswith(".s"):
            kk, vv = a.split("="); opt[kk] = int(vv)
    k, ST = build(stamps=stamps, opt=opt)
    t = file_text([(k.name, 256, 256, LDS_BYTES)], [kernel_text(k)])
    open(out[0] if out else "fused.s", "w").write(t)
    print(k.name, "vgprs", k.v.high, "agprs", k.a.high, "sgprs", k.s.high, "instrs", k.E.n_ins, "nops", k.E.n_nop, "bytes", len(t))
    print(",".join(ST.names))
```

```python
import sys
from g1 import *
from prep import *
from conv import *
from g2 import *

L_PB = 138240
L_STG = 84992
L_G2 = 98304
LDS_BYTES = 163840


def build(name=KNAME, stamps=(), opt=None):
    opt = opt or {}
    k = K(name, nv=256, na=256)
    E = k.E
    k("s_cmp_ge_u32 s2, 256")
    k("s_cbranch_scc1 Lend_" + name)
    k.load_ptrs(["ws", "bre", "bim"])
    for n in ("x", "lre", "lim", "logdt"): k.make_srd(n, n, SIZE[n])
    k.make_srd("dbg", "dbg", 256)
    for n in ("k", "v", "shk"): k.make_srd(n, n, SIZE[n])
    lane, w = wave_ids(k)
    c, g = tile_ids(k); tc, dg = tile2_ids(k)
    ST = Stamps(k, bool(stamps), len(stamps))
    def st(nm):
        if nm in stamps: ST(nm)
    st("start"); st("rt0")
    l16 = lane16(k, lane); hm = hi_mask(k)
    vz = k.V(name="vz"); k(f"v_mov_b32 {vz}, 0")

    G = G1(k, lane, w, c, g, st)
    G.setup_dma()
    G.prologue_loads()
    N = Nonce(k, w); N.publish()
    G.params_load()
    P = PrepKV(k, lane, w, c, g, L_PB)
    P.setup(); P.loads(k if not opt.get("no_kvl") else Stream()); P.free_in_srds()
    k.load_ptrs(["cre", "cim", "ssk"])
    for n in ("gw", "ssd"): k.make_srd(n, n, SIZE[n])
    G.setup_frag()
    G.ebuf_zero(k)
    G.params_compute(k)
    G.params_free_tmp(); G.ebuf_zero_free()
    C = PrepC(k, lane, w, tc, dg, agpr=True); C.setup()
    GT = PrepGate(k, lane, w, c, g); GT.setup()
    CV = Conv(k, lane, w, tc, dg, 0); CV.setup()
    F = Flags(k, N.n)
    s_pu = k.S(); s_pc = k.S()
    k(f"s_lshl_b32 {s_pu}, {g}, 2\ns_add_u32 {s_pu}, {s_pu}, {w}\ns_lshl_b32 {s_pu}, {s_pu}, 4\ns_add_u32 {s_pu}, {s_pu}, {c}")
    k(f"s_lshl_b32 {s_pu}, {s_pu}, 3\ns_add_u32 {s_pu}, {s_pu}, {F_PU}")
    k(f"s_lshl_b32 {s_pc}, {dg}, 2\ns_add_u32 {s_pc}, {s_pc}, {w}\ns_lshl_b32 {s_pc}, {s_pc}, 5\ns_add_u32 {s_pc}, {s_pc}, {tc}")
    k(f"s_lshl_b32 {s_pc}, {s_pc}, 3\ns_add_u32 {s_pc}, {s_pc}, {F_PC}")
    vpoll = k.V(); t0 = k.V(); sa = k.S(); sb = k.S()
    k(f"s_lshl_b32 {sa}, {dg}, 1\ns_lshr_b32 s3, {tc}, 4\ns_add_u32 {sa}, {sa}, s3")
    k(f"s_lshl_b32 {sa}, {sa}, 2\ns_and_b32 s3, {tc}, 15\ns_lshr_b32 s3, s3, 2\ns_add_u32 {sa}, {sa}, s3")
    k(f"s_lshl_b32 {sa}, {sa}, 7\ns_add_u32 {sa}, {sa}, {F_PU}")
    k(f"s_lshl_b32 {sb}, {dg}, 2\ns_add_u32 {sb}, {sb}, {w}\ns_lshl_b32 {sb}, {sb}, 1\ns_and_b32 s3, {tc}, 1\ns_add_u32 {sb}, {sb}, s3")
    k(f"s_lshl_b32 {sb}, {sb}, 7\ns_add_u32 {sb}, {sb}, {F_PC}")
    k(f"v_and_b32 {t0}, 16, {lane}")
    k(f"v_cmp_eq_u32 vcc, 0, {t0}")
    k(f"v_mov_b32 {t0}, {sb}")
    k(f"v_mov_b32 {vpoll}, {sa}")
    k(f"v_cndmask_b32 {vpoll}, {t0}, {vpoll}, vcc")
    k(f"v_and_b32 {t0}, 15, {lane}")
    k(f"v_lshl_add_u32 {vpoll}, {t0}, 3, {vpoll}")
    k.v.free(t0); k.s.free(sa, sb)
    fv = k.V(2, 2, "fv")

    ev = {}
    def S(x):
        return ev.setdefault(x, Stream())
    kv0 = opt.get("kv0", 3)
    X = Stream
    on = lambda n: not opt.get("no_" + n)
    C.loads(S(kv0) if on("cl") else X())
    mode = opt.get("kvcm", 0)
    if mode:
        tmp = Stream(); P.compute(tmp)
        for i, op in enumerate(tmp):
            isds = op[0].startswith("ds_")
            if mode == 1: S(kv0).append((f"v_fmac_f32 {P.tmp[0]['kk'][i % 7]}, {P.tmp[0]['w'][0]}, {P.tmp[0]['w'][1]}", None))
            elif mode == 2 and not isds: S(kv0).append(op)
            elif mode == 3 and isds: S(kv0).append(op)
            elif mode == 4: S(kv0).append(("s_nop 0", None))
            elif mode == 5: S(kv0).append((f"v_mov_b32 {P.tmp[0]['kk'][i % 7]}, {P.tmp[0]['w'][0]}", None))
    else:
        P.compute(S(kv0) if on("kvc") else X())
    kv1 = opt.get("kv1", 9)
    P.store(S(kv1 + 0.5) if on("kvs") else X())
    P.free()
    GT.alloc(); CV.k_alloc(S(kv1 + 0.5))
    GT.loads(S(kv1 + 0.5) if on("gate") else X())
    CV.k_loads(S(kv1 + 0.5) if on("kl") else X())
    C.stores(S(kv1 + 0.5) if on("cs") else X())
    N.load(S(kv1 + 0.5))
    GT.compute(S(kv1 + 3) if on("gate") else X()); GT.store(S(kv1 + 3) if on("gate") else X())
    s12 = S(opt.get("pub", 13))
    s12.do(lambda E: N.get())
    s12.do(lambda E: E.wait_tag("ust", "cst"))
    if not on("pub"): s12.clear(); s12.do(lambda E: N.get()); s12 = X()
    F.publish(s12, fv, vz, s_pu, "pubf"); F.publish(s12, fv, vz, s_pc, "pubf")
    F.load(S(14) if on("pub") else X(), fv, vpoll)
    s15 = S(14.5) if on("kb") else X()
    CV.k_build(s15)
    prebar = {kv1: (lambda: E.wait_tag("kvw"))}
    G.stamp_at = range(16)
    G.mainloop(events=ev, prebar=prebar, nslot=opt.get("nslot1", 5))
    if G.bg_left: print("G1 background ops left over:", G.bg_left)
    if opt.get("stop1"):
        E.wait_all(); st("drained"); ST.flush(0)
        E.label("Lend_" + name); k("s_endpgm")
        return k, ST
    G.free_loop()
    C.free(); GT.free(); CV.k_free()
    k.s.free(s_pu, s_pc)
    k.free_srd("x", "dbg")

    G2_ = G2(k, lane, w, tc, dg, ring=L_G2, slot_order=(2, 3, 0, 1), xb=0, yb=16384, sc_in="" if opt.get("nosc") else "sc0 sc1")
    G.STG = L_STG
    F.check(fv, vpoll)
    st("pflags")
    CV.u_dma(k, "sc0 sc1")
    G2_.setup_c()
    cl = G2_.c_load_ops()
    G.horner()
    E.wait_all(vm=False)
    k("s_barrier")
    G.combine()
    G.publish_S(N.n)
    st("published")
    k.v.free(vpoll)

    nc1 = opt.get("nc1", 24)
    b1 = Stream()
    G.carry_setup(b1)
    sz = Stream(); G.scale_z_plain(sz)
    mix = []
    szl = list(sz)
    per = max(len(szl) // nc1, 1)
    for i in range(nc1):
        mix += cl[i]
        mix += szl[i * per:(i + 1) * per] if i < nc1 - 1 else szl[i * per:]
    b1 += mix
    G.carry_loads(b1)
    E.wait_tag("kcw", "udma")
    CV.u_free()
    if opt.get("dbg"): print("before conv1 free", k.v.nfree(), k.v.used_map())
    CV.groups(range(0, 4), bg=b1, npool=opt.get("np1", 13), per_slot=opt.get("ps1", 2))
    b1.release(k)
    st("conv1")

    G.carry(first_loads_issued=True)
    st("carry")
    G.final_scan()
    E.wait_all(vm=False)
    k("s_barrier")
    G.store_h("sc0 sc1")
    st("hstored")

    b2 = Stream()
    s_hf = k.S(); vh = k.V(); s_yf = k.S()
    b2(f"s_lshl_b32 {s_hf}, {c}, 4\ns_add_u32 {s_hf}, {s_hf}, {g}\ns_lshl_b32 {s_hf}, {s_hf}, 2\ns_add_u32 {s_hf}, {s_hf}, {w}")
    b2(f"s_lshl_b32 {s_hf}, {s_hf}, 3\ns_add_u32 {s_hf}, {s_hf}, {F_H}")
    b2(f"s_lshl_b32 {s_yf}, {dg}, 5\ns_add_u32 {s_yf}, {s_yf}, {tc}\ns_lshl_b32 {s_yf}, {s_yf}, 2\ns_add_u32 {s_yf}, {s_yf}, {w}")
    b2(f"s_lshl_b32 {s_yf}, {s_yf}, 3\ns_add_u32 {s_yf}, {s_yf}, {F_Y}")
    b2(f"s_lshr_b32 s3, {tc}, 1\ns_lshl_b32 s3, s3, 9\ns_add_u32 s3, s3, {F_H}")
    b2(f"v_lshrrev_b32 {vh}, 1, {l16}\nv_add_u32 {vh}, s3, {vh}")
    G2_.setup(b2)
    nc2 = opt.get("nc2", 24)
    na = opt.get("nc2a", 10)
    for grp in cl[nc1:nc1 + na]: b2 += grp
    b2.do(lambda E: E.wait_tag("hst", "gst"))
    F.publish(b2, fv, vz, s_hf, "hflag")
    for grp in cl[nc1 + na:nc1 + nc2]: b2 += grp
    F.load(b2, fv, vh)
    CV.groups(range(4, 8), bg=b2, per_slot=opt.get("ps2", 1))
    b2.release(k)
    st("conv2")
    F.check(fv, vh)
    k.v.free(vh); k.s.free(s_hf)
    G2_.prologue_h(0, 2)
    st("hflags")
    CV.epilogue(); CV.epilogue_free()
    k.s.free(CV.d, CV.rowoff)
    k.free_srd("u")

    G2_.alloc_main()
    k.make_srd("x", "x", SIZE["x"])
    for n in ("dskip", "out"): k.make_srd(n, n, SIZE[n])
    G2_.xch_setup(F)
    G2_.epi_setup(); G2_.epi_alloc()
    vy = k.V(); fy = k.V(4, 2)
    k(f"s_lshl_b32 s3, {dg}, 10\ns_add_u32 s3, s3, {F_Y}\nv_add_u32 {vy}, s3, {l16}")
    e2 = {s: Stream() for s in range(16)}
    G2_.epi_x_dma(e2[1])
    e2[2].do(lambda E: E.wait_tag("yst"))
    F.publish(e2[2], fv, vz, s_yf, "yflag")
    F.load(e2[5], fy, vy)
    e2[6].do(lambda E: F.check(fy, vy))
    G2_.epi_y_dma(e2[6]); G2_.epi_small_loads(e2[6])
    G2_.xch_stores(e2[8])
    G2_.xch_publish(e2[10])
    G2_.epi_pre(e2[10])
    G2_.xch_flag_load(e2[12])
    G2_.xch_recv(e2[13])
    G2_.xch_fold(e2[15])
    G2_.stamp_at = range(16)
    G2_.mainloop(events=e2, npre=2, stamp=st, late=cl[nc1 + nc2:],
                 prebar={9: (lambda: E.wait_tag("xdma", "ydma"))})
    G2_.epi_final()
    st("stored")
    if stamps:
        E.wait_all()
        st("drained"); st("rt1")
        ST.flush(0)
    E.label("Lend_" + name)
    k("s_endpgm")
    return k, ST


if __name__ == "__main__":
    args = sys.argv[1:]
    out = [a for a in args if a.endswith(".s")]
    stamps = ()
    opt = {}
    for a in args:
        if a.startswith("st="): stamps = tuple(a[3:].split(","))
        elif "=" in a and not a.endswith(".s"):
            kk, vv = a.split("="); opt[kk] = int(vv)
    k, ST = build(stamps=stamps, opt=opt)
    t = file_text([(k.name, 256, 256, LDS_BYTES)], [kernel_text(k)])
    open(out[0] if out else "fused.s", "w").write(t)
    print(k.name, "vgprs", k.v.high, "agprs", k.a.high, "sgprs", k.s.high, "instrs", k.E.n_ins, "nops", k.E.n_nop, "bytes", len(t))
    print(",".join(ST.names))
```

```python
from asm import *

KA = dict(x=0, lre=8, lim=16, bre=24, bim=32, cre=40, cim=48, logdt=56, dskip=64, q=72, k=80, v=88,
          shk=96, ssk=104, ssd=112, gw=120, out=128, dbg=136, ws=144)
SIZE = dict(x=4 << 20, lre=2048, lim=2048, bre=2 << 20, bim=2 << 20, cre=2 << 20, cim=2 << 20, logdt=2048, dskip=2048,
            k=4 << 20, v=4 << 20, shk=8192, ssk=4 << 20, ssd=2048, gw=2048, out=8 << 20, dbg=256, ws=256 << 20)

WS_H = 0
WS_U = 8 << 20
WS_Y = 12 << 20
WS_C = 16 << 20
WS_G = 20 << 20
WS_S = (20 << 20) + 65536
WS_F = (20 << 20) + (512 << 10)
WS_T = 22 << 20
WS_X = 24 << 20
F_PU = 0
F_PC = 8192
F_H = 16384
F_Y = 24576
F_X = 32768
F_SIZE = 40960
F4_U = 0
F4_C = 8192
F4_H = 16384
F4_Y = 24576
WS_DUMP = 32 << 20
SENTINEL = 0xFFFFFFFF
KNAME = "gated_mix__ssm_conv_s5__ssm_conv_h3__prompt_kernel"
SRD3 = 0x00020000


class K:
    def __init__(self, name, nv=256, na=0):
        self.name = name
        self.E = Emitter(); self.E.prefix = name[:4] + "_"
        self.v = Alloc("v", 1, nv)
        self.a = Alloc("a", 0, max(na, 1))
        self.s = Alloc("s", 4, 100)
        self.nv, self.na = nv, na
        self.srds = {}
        self.ptrs = {}
    def __call__(self, text, tag=None):
        self.E(text, tag)
    def V(self, n=1, align=None, name=None): return self.v.alloc(n, align, name)
    def S(self, n=1, align=None, name=None): return self.s.alloc(n, align, name)
    def A(self, n=1, align=None, name=None): return self.a.alloc(n, align, name)

    def load_ptrs(self, names):
        for n in names:
            if n not in self.ptrs:
                p = self.S(2, 2); self.ptrs[n] = p
                self(f"s_load_dwordx2 {p}, s[0:1], {KA[n]}")
    def load_all_ptrs(self):
        a = self.S(16, 4); b = self.S(16, 4); c = self.S(4, 4); d = self.S(2, 2)
        self(f"s_load_dwordx16 {a}, s[0:1], 0")
        self(f"s_load_dwordx16 {b}, s[0:1], 64")
        self(f"s_load_dwordx4 {c}, s[0:1], 128")
        self(f"s_load_dwordx2 {d}, s[0:1], 144")
        for n, off in KA.items():
            if off < 64: self.ptrs[n] = a[off // 4:off // 4 + 2]
            elif off < 128: self.ptrs[n] = b[(off - 64) // 4:(off - 64) // 4 + 2]
            elif off < 144: self.ptrs[n] = c[(off - 128) // 4:(off - 128) // 4 + 2]
            else: self.ptrs[n] = d
    def free_ptrs(self, *names):
        for n in names: self.s.free(self.ptrs.pop(n))
    def make_srd(self, key, ptr, size, off=0, st=None):
        st = st or self
        r = self.S(4, 4)
        if ptr not in self.ptrs:
            assert off == 0
            st(f"s_load_dwordx2 {r[0:2]}, s[0:1], {KA[ptr]}")
        else:
            p = self.ptrs[ptr]
            if off:
                atomic(st, f"s_add_u32 {r[0]}, {p[0]}, {off}\ns_addc_u32 {r[1]}, {p[1]}, 0")
            else:
                st(f"s_mov_b32 {r[0]}, {p[0]}")
                st(f"s_mov_b32 {r[1]}, {p[1]}")
        st(f"s_mov_b32 {r[2]}, {size}")
        st(f"s_mov_b32 {r[3]}, {SRD3}")
        self.srds[key] = r
        return r
    def get_srd(self, key, ptr, size, off=0, st=None):
        return self.srds.get(key) or self.make_srd(key, ptr, size, off, st)
    def free_srd(self, *keys):
        for key in keys: self.s.free(self.srds.pop(key))


def kernel_text(k, vgpr_total=None, accum=None):
    nv = k.v.high
    accum = accum or ((nv + 3) // 4 * 4)
    na = k.a.high if k.na else 0
    total = vgpr_total or (accum + na)
    ns = max(k.s.high, 16)
    body = k.E.text()
    return f""".text
.globl {k.name}
.p2align 8
.type {k.name},@function
{k.name}:
{body}
.section .rodata,"a"
.p2align 6
.amdhsa_kernel {k.name}
  .amdhsa_next_free_vgpr {total}
  .amdhsa_next_free_sgpr {ns}
  .amdhsa_accum_offset {accum}
  .amdhsa_group_segment_fixed_size 0
  .amdhsa_kernarg_size 152
  .amdhsa_user_sgpr_count 2
  .amdhsa_user_sgpr_kernarg_segment_ptr 1
  .amdhsa_system_sgpr_workgroup_id_x 1
  .amdhsa_float_denorm_mode_32 3
.end_amdhsa_kernel
"""

HEADER_ARGS = open(__file__.replace("common.py", "header.txt")).read()

def file_text(launches, kernels):
    out = HEADER_ARGS
    if len(launches) == 1 and launches[0][0] == KNAME:
        n, g, b, l = launches[0]
        out += f"; @launch grid=({g},1,1) block=({b},1,1) lds={l}\n"
    else:
        for n, g, b, l in launches:
            out += f"; @launch kernel={n} grid=({g},1,1) block=({b},1,1) lds={l}\n"
    out += '.amdgcn_target "amdgcn-amd-amdhsa--gfx950"\n'
    for t in kernels:
        out += t
    return out


class Stamps:
    def __init__(self, k, enable=True, n=0):
        self.k, self.names, self.regs, self.enable = k, [], [], enable
        self.pre = [k.S(2, 2) for _ in range(n)]
    def __call__(self, name):
        if not self.enable: return
        r = self.pre.pop(0) if self.pre else self.k.S(2, 2)
        self.names.append(name); self.regs.append(r)
        self.k(f"s_memrealtime {r}" if name.startswith("rt") else f"s_memtime {r}")
    def flush(self, slot=0):
        if not self.enable: return
        k = self.k
        k.E.wait_all()
        srd = k.make_srd("stamps", "ws", 1 << 20, WS_T + slot * 65536 * 4)
        t = k.V(2, 2); o = k.V()
        k(f"v_lshrrev_b32 {o}, 6, v0")
        k(f"v_lshlrev_b32 {o}, 8, {o}")
        k(f"s_lshl_b32 s3, s2, 10")
        k(f"v_add_u32 {o}, s3, {o}")
        for i, r in enumerate(self.regs):
            k(f"v_mov_b32 {t[0]}, {r[0]}\nv_mov_b32 {t[1]}, {r[1]}")
            k(f"buffer_store_dwordx2 {t}, {o}, {srd}, 0 offen offset:{8 * i}")
            k("s_nop 1")
        k.E.wait_all()


class Nonce:
    def __init__(self, k, w, late=False):
        self.k, self.w = k, w
        self.n = k.S(2, 2, "nonce")
        if late: k(f"s_memrealtime {self.n}", "nt")
        else: self.alloc()
    def alloc(self):
        k = self.k
        self.srd = k.get_srd("dbg", "dbg", 256)
        self.v = k.V(2, 2); self.z = k.V()
    def publish(self, have_time=False):
        k = self.k
        lab = k.E.newlabel("Lnonce")
        if have_time: k.E.wait_tag("nt")
        snap = k.E.snapshot()
        k(f"s_or_b32 s3, s2, {self.w}")
        k(f"s_cmp_lg_u32 s3, 0")
        k(f"s_cbranch_scc1 {lab}")
        if not have_time:
            k(f"s_memrealtime {self.n}", "nt")
            k.E.wait_tag("nt")
        k(f"v_mov_b32 {self.v[0]}, {self.n[0]}\nv_mov_b32 {self.v[1]}, {self.n[1]}\nv_mov_b32 {self.z}, 0")
        k(f"buffer_store_dwordx2 {self.v}, {self.z}, {self.srd}, 0 offen sc0 sc1", "npub")
        k("s_nop 1")
        k.E.label(lab)
        k.E.restore(snap)
    def load(self, st=None):
        k = self.k; st = st or k
        st(f"v_mov_b32 {self.z}, 0")
        st(f"buffer_load_dwordx2 {self.v}, {self.z}, {self.srd}, 0 offen sc0 sc1", "nld")
    def get(self):
        k = self.k; E = k.E
        ok = E.newlabel("Lnok"); retry = E.newlabel("Lnretry")
        cnt = k.S()
        k(f"s_mov_b32 {cnt}, 0")
        k(f"v_readfirstlane_b32 {self.n[0]}, {self.v[0]}\nv_readfirstlane_b32 {self.n[1]}, {self.v[1]}")
        k(f"s_or_b32 s3, {self.n[0]}, {self.n[1]}")
        k(f"s_cmp_lg_u32 s3, 0")
        k(f"s_cbranch_scc1 {ok}")
        E.label(retry)
        E.raw(f"    buffer_load_dwordx2 {self.v}, {self.z}, {self.srd}, 0 offen sc0 sc1")
        E.raw("    s_waitcnt vmcnt(0)")
        E.raw(f"    v_readfirstlane_b32 {self.n[0]}, {self.v[0]}")
        E.raw(f"    v_readfirstlane_b32 {self.n[1]}, {self.v[1]}")
        E.raw(f"    s_add_u32 {cnt}, {cnt}, 1")
        E.raw(f"    s_nop 3")
        E.raw(f"    s_or_b32 s3, {self.n[0]}, {self.n[1]}")
        E.raw(f"    s_cmp_gt_u32 {cnt}, 20000")
        E.raw(f"    s_cbranch_scc1 {ok}")
        E.raw(f"    s_cmp_eq_u32 s3, 0")
        E.raw(f"    s_cbranch_scc1 {retry}")
        E.label(ok)
        k.s.free(cnt); k.v.free(self.v, self.z)


class Flags:
    def __init__(self, k, nonce):
        self.k, self.n = k, nonce
        self.srd = k.make_srd("flags", "ws", F_SIZE, WS_F)
    def publish(self, st, v2, voff, soff, tag="flag"):
        k = self.k
        def f(E):
            sv = self.k.S(2, 2)
            E(f"v_mov_b32 {v2[0]}, {self.n[0]}\nv_mov_b32 {v2[1]}, {self.n[1]}")
            E(f"s_mov_b64 {sv}, exec")
            E(f"s_mov_b64 exec, 1")
            E(f"buffer_store_dwordx2 {v2}, {voff}, {self.srd}, {soff} offen sc0 sc1", tag)
            E(f"s_mov_b64 exec, {sv}")
            self.k.s.free(sv)
        if hasattr(st, "do"): st.do(f)
        else: f(k.E)
    def load(self, st, dst, voff, soff="0"):
        n = len(dst)
        st(f"buffer_load_dwordx{n} {dst}, {voff}, {self.srd}, {soff} offen sc0 sc1", "flagld")
    def check(self, dst, voff, soff="0", slow_tmp=None):
        k = self.k; E = k.E
        n = len(dst) // 2
        def cmp(raw):
            put = (lambda t: E.raw("    " + t)) if raw else k
            put(f"v_cmp_ne_u64 vcc, {self.n}, {dst[0:2]}")
            if n == 2:
                m = self._m
                put(f"v_cmp_ne_u64 {m}, {self.n}, {dst[2:4]}")
                if raw: put("s_nop 4")
                put(f"s_or_b64 vcc, vcc, {m}")
            if raw: put("s_nop 4")
        self._m = k.S(2, 2); cnt = k.S()
        done = E.newlabel("Lfdone"); lab = E.newlabel("Lfpoll")
        k(f"s_mov_b32 {cnt}, 0")
        cmp(False)
        k(f"s_cbranch_vccz {done}")
        E.label(lab)
        E.raw(f"    buffer_load_dwordx{len(dst)} {dst}, {voff}, {self.srd}, {soff} offen sc0 sc1")
        E.raw("    s_waitcnt vmcnt(0)")
        cmp(True)
        E.raw(f"    s_add_u32 {cnt}, {cnt}, 1")
        E.raw(f"    s_cmp_gt_u32 {cnt}, 20000")
        E.raw(f"    s_cbranch_scc1 {done}")
        E.raw(f"    s_cbranch_vccnz {lab}")
        E.label(done)
        k.s.free(self._m, cnt)
```

```python
from common import *
from prep import hi_mask, lane16


def shell_order():
    out = []
    for s in range(8):
        for o in range(s + 1):
            if s + o > 7: continue
            if o == s: out.append((s, s))
            else: out += [(o, s), (s, o)]
    assert len(out) == 36 and len(set(out)) == 36
    return out


class Conv:
    KSTR = 4160
    KREG = 4 * 4160
    UREG = 4608
    WREG = KREG + UREG

    def __init__(self, k, lane, w, tc, dg, lds_base, sc="sc0 sc1"):
        self.k, self.lane, self.w, self.tc, self.dg, self.LB, self.sc = k, lane, w, tc, dg, lds_base, sc

    def setup(self):
        k, lane, w = self.k, self.lane, self.w
        d = self.d = k.S(name="chan")
        k(f"s_lshl_b32 {d}, {self.dg}, 7")
        k(f"s_lshl_b32 s3, {self.tc}, 2")
        k(f"s_add_u32 {d}, {d}, s3")
        k(f"s_add_u32 {d}, {d}, {w}")
        self.rowoff = k.S(name="rowoff")
        k(f"s_lshl_b32 {self.rowoff}, {d}, 12")
        r = self.srdK = k.S(4, 4); p = k.ptrs["ssk"]
        k(f"s_add_u32 {r[0]}, {p[0]}, {self.rowoff}")
        k(f"s_addc_u32 {r[1]}, {p[1]}, 0")
        k(f"s_mov_b32 {r[2]}, 4096")
        k(f"s_mov_b32 {r[3]}, {SRD3}")
        k.free_ptrs("ssk")
        self.srdU = k.get_srd("u", "ws", 4 << 20, WS_U)
        self.srdD = k.get_srd("ssd", "ssd", SIZE["ssd"])
        self.wb = k.S(name="convbase")
        k(f"s_mul_i32 {self.wb}, {w}, {self.WREG}")
        if self.LB: k(f"s_add_u32 {self.wb}, {self.wb}, {self.LB}")
        self.l16 = lane16(k, lane)
        a = k.V(); q = k.V(); t = k.V(); t2 = k.V()
        k(f"v_and_b32 {a}, 15, {lane}")
        k(f"v_lshrrev_b32 {q}, 4, {lane}")
        self.aA = k.V(name="aA"); self.aB = k.V(name="aB"); self.aE = k.V(name="aE")
        k(f"v_add_u32 {t}, 1, {a}")
        k(f"v_and_b32 {t2}, 3, {t}")
        k(f"v_mul_u32_u24 {t2}, {self.KSTR}, {t2}")
        k(f"v_and_b32 {t}, 28, {t}")
        k(f"v_lshl_add_u32 {t2}, {t}, 1, {t2}")
        k(f"v_lshl_add_u32 {t2}, {q}, 4, {t2}")
        k(f"v_add_u32 {self.aA}, {self.wb}, {t2}")
        k(f"s_add_u32 s3, {self.wb}, {self.KREG + 480}")
        k(f"v_lshlrev_b32 {t}, 5, {a}")
        k(f"v_sub_u32 {t}, s3, {t}")
        k(f"v_lshl_add_u32 {self.aB}, {q}, 4, {t}")
        k(f"v_lshlrev_b32 {t2}, 3, {q}")
        k(f"v_sub_u32 {t}, {t}, {t2}")
        k(f"v_add_u32 {self.aE}, 24, {t}")
        self.yo = k.V(name="yo")
        k(f"v_and_b32 {t}, 1, {q}")
        k(f"v_lshlrev_b32 {t}, 9, {t}")
        k(f"v_lshl_add_u32 {t}, {a}, 5, {t}")
        k(f"v_lshrrev_b32 {t2}, 1, {q}")
        k(f"v_lshl_add_u32 {self.yo}, {t2}, 4, {t}")
        k.v.free(a, q, t, t2)
        self.hm = hi_mask(k)
        self.acc = None

    def k_alloc(self, st=None):
        k = self.k; st = st or k
        self.kD = [k.V(4, 2) for _ in range(5)]; self.kN = [k.V(2, 2) for _ in range(5)]
        self.kT = [k.V(4, 2) for _ in range(3)]
        self.kh = k.V(2, 1); self.kw = k.V()
        self.vD = k.V(name="ssmD")
        st(f"v_subrev_u32 {self.kh[0]}, 32, {self.l16}")
        st(f"v_min_u32 {self.kh[0]}, 0x7fff0000, {self.kh[0]}")
        st(f"v_subrev_u32 {self.kh[1]}, 16, {self.l16}")
        st(f"v_min_u32 {self.kh[1]}, 0x7fff0000, {self.kh[1]}")
        st(f"v_add_u32 {self.kw}, {self.wb}, {self.l16}")

    def k_loads(self, st):
        k = self.k
        st(f"buffer_load_dwordx4 {self.kD[4]}, {self.kh[0]}, {self.srdK}, 0 offen")
        st(f"buffer_load_dwordx2 {self.kN[4]}, {self.kh[1]}, {self.srdK}, 0 offen")
        for p in range(4):
            st(f"buffer_load_dwordx4 {self.kD[p]}, {self.l16}, {self.srdK}, 0 offen offset:{1024 * p}")
            st(f"buffer_load_dwordx2 {self.kN[p]}, {self.l16}, {self.srdK}, 0 offen offset:{1024 * p + 16}")
        t = self.kT[0][0]
        atomic(st, f"s_lshl_b32 s3, {self.d}, 1\nv_mov_b32 {self.vD}, s3")
        st(f"buffer_load_ushort {self.vD}, {self.vD}, {self.srdD}, 0 offen")

    def k_build(self, st):
        A, T, B = self.kT
        for p in (4, 0, 1, 2, 3):
            D, N = self.kD[p], self.kN[p]
            off = 0 if p == 4 else 32 + 1024 * p
            dd = [D[0], D[1], D[2], D[3], N[0], N[1]]
            st(f"ds_write_b128 {self.kw}, {D} offset:{off}", "kcw")
            for i in range(4):
                st(f"v_alignbit_b32 {A[i]}, {dd[i + 1]}, {dd[i]}, 16")
            st(f"v_pk_mov_b32 {T[0:2]}, {D[0:2]}, {D[2:4]} op_sel:[1,0]")
            st(f"v_pk_mov_b32 {T[2:4]}, {D[2:4]}, {N[0:2]} op_sel:[1,0]")
            st(f"ds_write_b128 {self.kw}, {A} offset:{off + self.KSTR}", "kcw")
            st(f"v_pk_mov_b32 {B[0:2]}, {A[0:2]}, {A[2:4]} op_sel:[1,0]")
            st(f"v_mov_b32 {B[2]}, {A[3]}")
            st(f"v_alignbit_b32 {B[3]}, {dd[5]}, {dd[4]}, 16")
            st(f"ds_write_b128 {self.kw}, {T} offset:{off + 2 * self.KSTR}", "kcw")
            st(f"ds_write_b128 {self.kw}, {B} offset:{off + 3 * self.KSTR}", "kcw")
        st(f"v_lshlrev_b32 {self.vD}, 16, {self.vD}")

    def k_free(self):
        k = self.k
        k.v.free(*self.kD, *self.kN, *self.kT, self.kh, self.kw)
        k.s.free(self.srdK); k.free_srd("ssd")

    def u_dma(self, st, sc=""):
        k = self.k
        z = self.uz = k.V(2, 2); a = self.ua = k.V()
        st(f"s_add_u32 m0, {self.wb}, {self.KREG}")
        for p in range(4):
            st(f"buffer_load_dwordx4 {self.l16}, {self.srdU}, {self.rowoff} offen offset:{1024 * p} {sc} lds", "udma")
        st(f"v_mov_b32 {z[0]}, 0\nv_mov_b32 {z[1]}, 0")
        st(f"v_lshrrev_b32 {a}, 1, {self.l16}")
        st(f"v_add_u32 {a}, {self.wb}, {a}")
        st(f"ds_write_b64 {a}, {z} offset:{self.KREG + 4096}", "kcw")
    def u_free(self):
        self.k.v.free(self.uz, self.ua)

    def b_read(self, r, m):
        self.k(f"ds_read_b128 {r}, {self.aB} offset:{4032 - 64 * m}")
    def e_read(self, st, dst, ct):
        st(f"ds_read_b64 {dst}, {self.aE} offset:{3584 - 512 * ct}")
    def free_frag(self):
        self.k.v.free(self.aA, self.aB)

    def groups(self, rhos, bg=None, npool=14, lead=7, per_slot=1):
        k = self.k; E = k.E
        bg = list(bg or [])
        if self.acc is None:
            self.acc = [k.V(4, 2) for _ in range(8)]
            self.started = set()
        order = shell_order()
        slots = [(rho, mu, nu) for rho in rhos for (mu, nu) in order]
        first, last = {}, {}
        for s, (rho, mu, nu) in enumerate(slots):
            for key in (("A", rho, nu), ("B", rho, mu)):
                first.setdefault(key, s); last[key] = s
        pending = sorted(first, key=lambda x: (first[x], x[0]))
        pool = [k.V(4, 2) for _ in range(npool)]
        free = list(pool); where = {}
        def issue(key):
            r = free.pop(0); where[key] = r
            kind, rho, i = key
            if kind == "A":
                n = 8 * i - rho
                off = 448 + 64 * n
                k(f"ds_read_b64 {r[0:2]}, {self.aA} offset:{off}")
                k(f"ds_read_b64 {r[2:4]}, {self.aA} offset:{off + 8}")
            else:
                m = 8 * i + rho
                self.b_read(r, m)
        while pending and first[pending[0]] < lead and free:
            issue(pending.pop(0))
        for s, (rho, mu, nu) in enumerate(slots):
            ct = mu + nu
            a, b = where[("A", rho, nu)], where[("B", rho, mu)]
            cin = f"{self.acc[ct]}" if ct in self.started else "0"
            self.started.add(ct)
            k(f"v_mfma_f32_16x16x32_bf16 {self.acc[ct]}, {a}, {b}, {cin}")
            for key in (("A", rho, nu), ("B", rho, mu)):
                if last[key] == s: free.append(where[key])
            n = 0
            while pending and first[pending[0]] <= s + lead and free and n < 1:
                issue(pending.pop(0)); n += 1
            for _ in range(per_slot if n == 0 else max(per_slot - 1, 0)):
                if bg: emit_op(E, bg.pop(0))
            if s + 1 < len(slots):
                r2, m2, n2 = slots[s + 1]
                for key in (("A", r2, n2), ("B", r2, m2)):
                    while key not in where:
                        assert free, "conv fragment pool too small"
                        issue(pending.pop(0))
        emit_stream(E, bg)
        k.v.free(*pool)

    def epilogue(self, st=None):
        k = self.k; st = st or k
        self.srdY = k.get_srd("y", "ws", 4 << 20, WS_Y, st)
        e = [k.V(2, 2) for _ in range(8)]
        t = k.V(4, 1); Q = [k.V(4, 2) for _ in range(2)]
        so = k.S()
        for ct in range(8):
            self.e_read(st, e[ct], ct)
        st(f"s_mov_b32 {so}, {self.rowoff}")
        for ct in range(8):
            q = Q[(ct >> 1) & 1]; a = self.acc[ct]; h = 2 * (ct & 1)
            st(f"v_and_b32 {t[0]}, {self.hm}, {e[ct][1]}")
            st(f"v_lshlrev_b32 {t[1]}, 16, {e[ct][1]}")
            st(f"v_and_b32 {t[2]}, {self.hm}, {e[ct][0]}")
            st(f"v_lshlrev_b32 {t[3]}, 16, {e[ct][0]}")
            for r in range(4):
                st(f"v_fmac_f32 {a[r]}, {self.vD}, {t[r]}")
            st(f"v_cvt_pk_bf16_f32 {q[h]}, {a[0]}, {a[1]}")
            st(f"v_cvt_pk_bf16_f32 {q[h + 1]}, {a[2]}, {a[3]}")
            if ct & 1:
                st(f"v_permlane16_swap_b32 {q[0]}, {q[2]}")
                st(f"v_permlane16_swap_b32 {q[1]}, {q[3]}")
                st(f"buffer_store_dwordx4 {q}, {self.yo}, {self.srdY}, {so} offen offset:{1024 * (ct >> 1)} {self.sc}", "yst")
        self._epi = (e, t, Q, so)
    def epilogue_free(self):
        k = self.k
        e, t, Q, so = self._epi
        k.v.free(*e, t, *Q, *self.acc, self.aE, self.yo, self.vD); k.s.free(so, self.wb)
        self.free_frag()
```

```python
from conv import *


class ConvB(Conv):
    UB = 131072
    KB = 0

    def __init__(self, k, lane, w, c, g, sc="sc0 sc1", nt="nt"):
        self.k, self.lane, self.w, self.c, self.g, self.sc, self.nt = k, lane, w, c, g, sc, nt
        self.acc = None

    def setup_k(self, st=None):
        k, lane, w, c, g = self.k, self.lane, self.w, self.c, self.g
        st = st or k
        d = self.d = k.S(name="chan")
        st(f"s_lshl_b32 {d}, {g}, 6")
        st(f"s_lshr_b32 s3, {c}, 3")
        st(f"s_lshl_b32 s3, s3, 5")
        st(f"s_add_u32 {d}, {d}, s3")
        st(f"s_lshl_b32 s3, {w}, 3")
        st(f"s_add_u32 {d}, {d}, s3")
        st(f"s_and_b32 s3, {c}, 7")
        st(f"s_add_u32 {d}, {d}, s3")
        self.rowoff = k.S(name="rowoff")
        st(f"s_lshl_b32 {self.rowoff}, {d}, 12")
        r = self.srdK = k.S(4, 4); p = k.ptrs["ssk"]
        atomic(st, f"s_add_u32 {r[0]}, {p[0]}, {self.rowoff}\ns_addc_u32 {r[1]}, {p[1]}, 0")
        st(f"s_mov_b32 {r[2]}, 4096")
        st(f"s_mov_b32 {r[3]}, {SRD3}")
        self.srdU = k.get_srd("u", "ws", 4 << 20, WS_U, st)
        self.srdD = k.make_srd("ssd", "ssd", SIZE["ssd"], 0, st)
        self.wb = k.S(name="convbase")
        st(f"s_mul_i32 {self.wb}, {w}, {self.KREG}")
        self.l16 = lane16(k, lane)
        self.uvo = k.V(); self.uso = k.S(); self.um0 = k.S()
        t = k.V(); u = k.V()
        st(f"v_lshrrev_b32 {t}, 4, {lane}")
        st(f"v_and_b32 {u}, 3, {lane}")
        st(f"v_xor_b32 {u}, {u}, {t}")
        st(f"v_lshlrev_b32 {u}, 4, {u}")
        st(f"v_lshrrev_b32 {t}, 2, {lane}")
        st(f"v_lshl_add_u32 {self.uvo}, {t}, 6, {u}")
        st(f"s_lshl_b32 {self.uso}, {g}, 4")
        st(f"s_add_u32 {self.uso}, {self.uso}, {c}")
        st(f"s_lshl_b32 {self.uso}, {self.uso}, 14")
        st(f"s_lshl_b32 {self.um0}, {w}, 12")
        st(f"s_add_u32 {self.uso}, {self.uso}, {self.um0}")
        st(f"s_add_u32 {self.um0}, {self.um0}, {self.UB}")
        tfree(k, st, t, u)
        self.hm = hi_mask(k)

    def setup_frag(self, st=None):
        k, lane, w = self.k, self.lane, self.w
        st = st or k
        a = k.V(); q = k.V(); t = k.V(); t2 = k.V()
        st(f"v_and_b32 {a}, 15, {lane}")
        st(f"v_lshrrev_b32 {q}, 4, {lane}")
        self.aA = k.V(name="aA"); self.aB = [k.V() for _ in range(4)]; self.aE = k.V(name="aE")
        st(f"v_add_u32 {t}, 1, {a}")
        st(f"v_and_b32 {t2}, 3, {t}")
        st(f"v_mul_u32_u24 {t2}, {self.KSTR}, {t2}")
        st(f"v_and_b32 {t}, 28, {t}")
        st(f"v_lshl_add_u32 {t2}, {t}, 1, {t2}")
        st(f"v_lshl_add_u32 {t2}, {q}, 4, {t2}")
        st(f"v_add_u32 {self.aA}, {self.wb}, {t2}")
        st(f"v_lshlrev_b32 {t}, 1, {a}")
        st(f"v_sub_u32 {t}, {q}, {t}")
        st(f"v_add_u32 {t}, 30, {t}")
        st(f"v_lshrrev_b32 {t2}, 2, {t}")
        st(f"v_lshlrev_b32 {t}, 6, {t}")
        st(f"v_add_u32 {t}, {self.UB}, {t}")
        for mu in range(4):
            b = self.aB[mu]
            st(f"v_add_u32 {b}, {63 - mu}, {t2}")
            st(f"v_and_b32 {b}, 3, {b}")
            st(f"v_xor_b32 {b}, {w}, {b}")
            st(f"v_lshl_add_u32 {b}, {b}, 4, {t}")
        st(f"v_lshlrev_b32 {t}, 5, {a}")
        st(f"v_lshl_add_u32 {t}, {q}, 3, {t}")
        st(f"v_sub_u32 {t}, 504, {t}")
        st(f"v_and_b32 {self.aE}, 8, {t}")
        st(f"v_lshrrev_b32 {t}, 4, {t}")
        st(f"v_lshl_add_u32 {self.aE}, {t}, 6, {self.aE}")
        st(f"v_bfe_u32 {t}, {t}, 2, 2")
        st(f"v_xor_b32 {t}, {w}, {t}")
        st(f"v_lshl_add_u32 {self.aE}, {t}, 4, {self.aE}")
        st(f"v_add_u32 {self.aE}, {self.UB}, {self.aE}")
        self.yo = k.V(name="yo")
        st(f"v_and_b32 {t}, 1, {q}")
        st(f"v_lshlrev_b32 {t}, 9, {t}")
        st(f"v_lshl_add_u32 {t}, {a}, 5, {t}")
        st(f"v_lshrrev_b32 {t2}, 1, {q}")
        st(f"v_lshl_add_u32 {self.yo}, {t2}, 4, {t}")
        tfree(k, st, a, q, t, t2)

    def k_loads(self, st):
        nt = self.nt
        st(f"buffer_load_dwordx4 {self.kD[4]}, {self.kh[0]}, {self.srdK}, 0 offen {nt}")
        st(f"buffer_load_dwordx2 {self.kN[4]}, {self.kh[1]}, {self.srdK}, 0 offen {nt}")
        for p in range(4):
            st(f"buffer_load_dwordx4 {self.kD[p]}, {self.l16}, {self.srdK}, 0 offen offset:{1024 * p} {nt}")
            st(f"buffer_load_dwordx2 {self.kN[p]}, {self.l16}, {self.srdK}, 0 offen offset:{1024 * p + 16} {nt}")
        atomic(st, f"s_lshl_b32 s3, {self.d}, 1\nv_mov_b32 {self.vD}, s3")
        st(f"buffer_load_ushort {self.vD}, {self.vD}, {self.srdD}, 0 offen")

    def k_free(self):
        k = self.k
        k.v.free(*self.kD, *self.kN, *self.kT, self.kh, self.kw)
        k.s.free(self.srdK); k.free_srd("ssd")

    def u_dma(self, st, sc="sc0 sc1"):
        def f(E):
            E(f"s_mov_b32 m0, {self.um0}")
            for p in range(4):
                E(f"buffer_load_dwordx4 {self.uvo}, {self.srdU}, {self.uso} offen offset:{1024 * p} {sc} lds", "udma")
        st.do(f)
    def u_free(self):
        self.k.v.free(self.uvo); self.k.s.free(self.uso, self.um0)

    def b_read(self, r, m):
        self.k(f"ds_read_b128 {r}, {self.aB[m & 3]} offset:{256 * (63 - m)}")
    def e_read(self, st, dst, ct):
        st(f"ds_read_b64 {dst}, {self.aE} offset:{2048 * (7 - ct)}")
    def free_frag(self):
        self.k.v.free(self.aA, *self.aB)
```

```python
from g1 import *


class G1B(G1):
    EBUF = 149504
    ZU = 147456
    STG = 98304

    def setup_dma_v(self):
        k, lane = self.k, self.lane
        self.voffA = k.V(4, 1); self.voffB = k.V(4, 1)
        t = k.V(); u = k.V()
        A, B = self.voffA, self.voffB
        k(f"v_lshrrev_b32 {t}, 4, {lane}")
        k(f"v_and_b32 {u}, 7, {lane}")
        k(f"v_xor_b32 {u}, {u}, {t}")
        k(f"v_lshlrev_b32 {u}, 4, {u}")
        k(f"v_lshrrev_b32 {t}, 3, {lane}")
        k(f"v_lshl_add_u32 {B[0]}, {t}, 11, {u}")
        k(f"v_and_b32 {t}, 32, {lane}")
        k(f"v_lshl_add_u32 {A[0]}, {t}, 11, {u}")
        k(f"v_and_b32 {t}, 8, {lane}")
        k(f"v_lshl_add_u32 {A[0]}, {t}, 12, {A[0]}")
        k(f"v_and_b32 {t}, 16, {lane}")
        k(f"v_lshl_add_u32 {A[0]}, {t}, 7, {A[0]}")
        k(f"v_xor_b32 {t}, 64, {A[0]}")
        k(f"v_xor_b32 {u}, 64, {B[0]}")
        k(f"v_add_u32 {A[1]}, 4096, {t}")
        k(f"v_add_u32 {A[2]}, 8192, {A[0]}")
        k(f"v_add_u32 {A[3]}, 12288, {t}")
        k(f"v_add_u32 {B[1]}, 16384, {u}")
        k(f"v_add_u32 {B[2]}, 32768, {B[0]}")
        k(f"v_add_u32 {B[3]}, 49152, {u}")
        k.v.free(t, u)

    def setup_dma_s(self):
        k, w, c, g = self.k, self.w, self.c, self.g
        self.kA = k.S(name="kA"); self.kB = k.S(name="kB"); self.m0base = k.S(name="m0base")
        t = k.S()
        k(f"s_lshr_b32 {t}, {w}, 1")
        k(f"s_lshl_b32 {self.kA}, {c}, 7")
        k(f"s_lshl_b32 s3, {t}, 6")
        k(f"s_add_u32 {self.kA}, {self.kA}, s3")
        k(f"s_and_b32 s3, {w}, 1")
        k(f"s_lshl_b32 s3, s3, 3")
        k(f"s_add_u32 {self.kA}, {self.kA}, s3")
        k(f"s_lshl_b32 {self.kA}, {self.kA}, 11")
        k(f"s_lshl_b32 {self.kB}, {g}, 6")
        k(f"s_lshl_b32 s3, {t}, 5")
        k(f"s_add_u32 {self.kB}, {self.kB}, s3")
        k(f"s_lshl_b32 {self.kB}, {self.kB}, 11")
        k(f"s_lshl_b32 {self.m0base}, {w}, 12")
        k.s.free(t)

    def setup_dma_srds(self, ntA="", ntB=""):
        k, w = self.k, self.w
        self.ntA, self.ntB = ntA, ntB
        self.srdA = k.make_srd("x", "x", SIZE["x"])
        r = k.S(4, 4); self.srdB = r
        pre, pim = k.ptrs["bre"], k.ptrs["bim"]
        k(f"s_and_b32 s3, {w}, 1")
        k(f"s_cmp_eq_u32 s3, 0")
        k(f"s_cselect_b32 {r[0]}, {pre[0]}, {pim[0]}")
        k(f"s_cselect_b32 {r[1]}, {pre[1]}, {pim[1]}")
        k(f"s_mov_b32 {r[2]}, {SIZE['bre']}")
        k(f"s_mov_b32 {r[3]}, {SRD3}")
        k.free_ptrs("bre", "bim")

    def dma_ops(self, st):
        slot = st % 4; ops = []
        for half, (voff, srd, ks, nt) in enumerate(((self.voffA, self.srdA, self.kA, self.ntA), (self.voffB, self.srdB, self.kB, self.ntB))):
            for q in range(4):
                m0 = slot * self.SLOT + half * 16384 + q * 1024
                pre = []
                if q == 0 and st > 0: pre.append((f"s_add_u32 {ks}, {ks}, 128", None))
                pre.append((f"s_add_u32 m0, {self.m0base}, {m0}", None))
                ops.append([pre, (f"buffer_load_dwordx4 {voff[q]}, {srd}, {ks} offen {nt} lds", f"g1st{st}")])
        return ops

    def prologue_stage(self, st):
        for pre, ld in self.dma_ops(st):
            for t, tag in pre: self.k(t, tag)
            self.k(*ld)

    def mainloop(self, events=None, prebar=None, postbar=None, nslot=4):
        k = self.k; E = k.E
        events = events or {}; prebar = prebar or {}; postbar = postbar or {}
        ns = nslot if isinstance(nslot, (list, tuple)) else [nslot] * self.NST
        bg = []
        E.wait_tag("g1st0")
        k("s_barrier")
        for t, tag in self.frag_reads(0, 0): k(t, tag)
        self.stamp("g1_loop_start")
        pend_dma = []
        for st in range(self.NST):
            bg += list(events.get(st, []))
            if st in getattr(self, "stamp_at", ()): self.stamp(f"a{st}")
            for kk in range(4):
                mf = self.mfmas(st, kk)
                fill = [[], [], [], []]
                if kk < 3:
                    rd = self.frag_reads(st, kk + 1)
                    fill[0] += rd[0:2]; fill[1] += rd[2:4]
                else:
                    E.wait_tag(f"fr{st}_3")
                    if st + 1 < self.NST: E.wait_tag(f"g1st{st + 1}")
                    if st in prebar: prebar[st]()
                    if st + 1 < self.NST: k("s_barrier")
                    if st in postbar: postbar[st]()
                    bg += list(events.get(st + 0.5, []))
                    if st + 1 < self.NST:
                        rd = self.frag_reads(st + 1, 0)
                        fill[0] += rd[0:2]; fill[1] += rd[2:4]
                    nxt = st + 4
                    if nxt < self.NST: pend_dma += self.dma_ops(nxt)
                pre = [[], [], [], []]
                n = 0
                while pend_dma and n < 2:
                    p, ld = pend_dma.pop(0)
                    pre[2 + n] += p; fill[2 + n].append(ld); n += 1
                for i in range(4):
                    for t, tag in pre[i]: k(t, tag)
                    k(mf[i])
                    for t, tag in fill[i]: k(t, tag)
                    nfill = len(fill[i]) + (len(pre[i + 1]) if i < 3 else 0)
                    for _ in range(max(ns[st] - nfill, 0)):
                        if bg: emit_op(E, bg.pop(0))
            if getattr(self, "verbose", False): print(f"  stage {st}: background left {len(bg)}")
        self.bg_left = len(bg)
        emit_stream(E, bg)
        self.stamp("g1_loop_end")

    def free_loop(self):
        k = self.k
        k.v.free(self.voffA, self.voffB)
        for hi in range(2): k.v.free(*self.adA[hi], *self.adB[hi])
        for f in self.fr: k.v.free(*f["A"], *f["B"])
        k.s.free(self.m0base, self.kA, self.kB, self.srdB)

    def zero_init(self):
        k = self.k
        z = k.V(4, 4); a = k.V()
        k(f"v_mov_b32 {z[0]}, 0\nv_mov_b32 {z[1]}, 0\nv_mov_b32 {z[2]}, 0\nv_mov_b32 {z[3]}, 0")
        k(f"v_lshlrev_b32 {a}, 4, v0")
        k(f"v_add_u32 {a}, {self.ZU}, {a}")
        k(f"ds_write_b128 {a}, {z}", "zi")
        k(f"v_lshlrev_b32 {a}, 2, v0")
        k(f"v_add_u32 {a}, {self.ZU + 4096}, {a}")
        k(f"ds_write_b32 {a}, {z[0]}", "zi")
        return z, a

    def params_load(self, st=None):
        k, lane, w, g = self.k, self.lane, self.w, self.g
        st = st or k
        self.ploc = k.V(name="ploc")
        st(f"s_and_b32 s3, {w}, 1")
        st(f"s_lshl_b32 s3, s3, 5")
        st(f"v_and_b32 {self.ploc}, 31, {lane}")
        st(f"v_add_u32 {self.ploc}, s3, {self.ploc}")
        off = k.V()
        st(f"s_lshl_b32 s3, {g}, 6")
        st(f"v_add_u32 {off}, s3, {self.ploc}")
        st(f"v_lshlrev_b32 {off}, 1, {off}")
        self.p_lre, self.p_lim, self.p_ldt = k.V(), k.V(), k.V()
        for dst, nm in ((self.p_lre, "lre"), (self.p_lim, "lim"), (self.p_ldt, "logdt")):
            srd = k.make_srd(nm, nm, 2048, 0, st)
            st(f"buffer_load_ushort {dst}, {off}, {srd}, 0 offen")
            k.free_srd(nm); k.free_ptrs(nm)
        self._poff = off

    def carry_setup(self, st=None):
        k = self.k; st = st or k
        self.cbase = k.V()
        self.sv = k.V(32, 2)
        self.l256 = k.V(2, 2)
        t = k.V()
        st(f"v_lshrrev_b32 {t}, 5, {self.lane}")
        st(f"v_lshlrev_b32 {t}, 10, {t}")
        st(f"v_sub_u32 {t}, {self.soff}, {t}")
        atomic(st, f"s_sub_u32 s3, {self.s_coff}, 1024\nv_add_u32 {self.cbase}, s3, {t}")
        L, D = self.l128, self.l256
        st(f"v_mul_f32 {D[0]}, {L[1]}, {L[1]}")
        st(f"v_fma_f32 {D[0]}, {L[0]}, {L[0]}, -{D[0]}")
        st(f"v_mul_f32 {D[1]}, {L[0]}, {L[1]}")
        st(f"v_add_f32 {D[1]}, {D[1]}, {D[1]}")
        self.cexp = k.V()
        st(f"v_lshrrev_b32 {t}, 5, {self.lane}")
        st(f"v_sub_u32 {t}, {self.c}, {t}")
        st(f"v_add_u32 {t}, 1, {t}")
        st(f"v_lshrrev_b32 {self.cexp}, 1, {t}")
        tfree(k, st, t)

    def carry_loads(self, st):
        for m in range(8):
            a = self.sv[4 * m]
            st(f"v_subrev_u32 {a}, {2048 * m}, {self.cbase}")
            st(f"v_min_u32 {a}, 0x7fff0000, {a}")
            st(f"buffer_load_dwordx4 {self.sv[4 * m:4 * m + 4]}, {a}, {self.srdS}, 0 offen sc0 sc1", "sld")

    def carry_check(self):
        k = self.k; sv = self.sv
        cnt = self._ccnt; ms = self._cms
        k(f"v_mov_b32 {cnt}, 0")
        for b in range(0, 8, 4):
            for m in range(b, b + 4):
                k(f"v_cmp_eq_u64 {ms[2 * (m - b):2 * (m - b) + 2]}, {self.nonce}, {sv[4 * m + 2:4 * m + 4]}")
            for m in range(b, b + 4):
                k(f"v_addc_co_u32 {cnt}, vcc, 0, {cnt}, {ms[2 * (m - b):2 * (m - b) + 2]}")
        k(f"v_cmp_ne_u32 vcc, {self.cexp}, {cnt}")

    def carry(self):
        k = self.k; E = k.E
        sv = self.sv
        self._ccnt = k.V(); self._cms = k.S(8, 2)
        cnt = k.S()
        k(f"s_mov_b32 {cnt}, 0")
        self.carry_check()
        done = E.newlabel("Lpolldone"); lab = E.newlabel("Lpoll")
        k(f"s_cbranch_vccz {done}")
        snap = E.snapshot()
        E.label(lab)
        self.carry_loads(k)
        E.wait_all()
        self.carry_check()
        k(f"s_add_u32 {cnt}, {cnt}, 1")
        k(f"s_cmp_gt_u32 {cnt}, 20000")
        k(f"s_cbranch_scc1 {done}")
        k(f"s_cbranch_vccnz {lab}")
        E.label(done)
        E.restore(snap)
        k("s_nop 4")
        L = self.l256
        T = k.V(2, 2)
        cur = sv[28:30]
        for m in range(6, -1, -1):
            z = sv[4 * m:4 * m + 2]
            k(f"v_fma_f32 {T[0]}, -{L[1]}, {cur[1]}, {z[0]}")
            k(f"v_fma_f32 {T[1]}, {L[1]}, {cur[0]}, {z[1]}")
            k(f"v_fma_f32 {z[0]}, {L[0]}, {cur[0]}, {T[0]}")
            k(f"v_fma_f32 {z[1]}, {L[0]}, {cur[1]}, {T[1]}")
            cur = z
        A = cur; B = sv[4:6]
        k(f"v_mov_b32 {B[0]}, {A[0]}\nv_mov_b32 {B[1]}, {A[1]}")
        k(f"v_permlane32_swap_b32 {A[0]}, {B[0]}")
        k(f"v_permlane32_swap_b32 {A[1]}, {B[1]}")
        H = k.V(2, 2); L = self.l128
        k(f"v_fma_f32 {T[0]}, -{L[1]}, {B[1]}, {A[0]}")
        k(f"v_fma_f32 {T[1]}, {L[1]}, {B[0]}, {A[1]}")
        k(f"v_fma_f32 {H[0]}, {L[0]}, {B[0]}, {T[0]}")
        k(f"v_fma_f32 {H[1]}, {L[0]}, {B[1]}, {T[1]}")
        self.H = H
        k.v.free(sv, self.cbase, T, self._ccnt, self.soff, self.cexp, self.l256)
        k.s.free(cnt, self._cms, self.srdS, self.s_coff)

    def hstore_setup(self, st=None):
        k, lane, w = self.k, self.lane, self.w
        st = st or k
        self.srdH = k.get_srd("h", "ws", 8 << 20, WS_H, st)
        self.sa = k.V(); self.ra = k.V(); self.hgo = k.V(); self.hso = k.S()
        t = k.V(); u = k.V(); wt = k.S()
        st(f"s_lshr_b32 {wt}, {w}, 1")
        st(f"v_lshrrev_b32 {t}, 5, {lane}")
        st(f"v_lshlrev_b32 {t}, 13, {t}")
        st(f"v_lshl_add_u32 {self.sa}, {self.ploc}, 2, {t}")
        st(f"s_lshl_b32 s3, {wt}, 14")
        st(f"s_add_u32 s3, s3, {self.STG}")
        st(f"v_add_u32 {self.sa}, s3, {self.sa}")
        st(f"v_lshrrev_b32 {t}, 4, {lane}")
        st(f"v_lshlrev_b32 {t}, 4, {t}")
        st(f"v_bfe_u32 {u}, {lane}, 3, 1")
        st(f"v_add_u32 {t}, {t}, {u}")
        st(f"v_and_b32 {self.hgo}, 7, {lane}")
        st(f"v_xor_b32 {u}, {u}, {self.hgo}")
        st(f"s_and_b32 s3, {w}, 1")
        st(f"s_lshl_b32 s3, s3, 3")
        st(f"v_or_b32 {u}, s3, {u}")
        st(f"v_lshlrev_b32 {u}, 4, {u}")
        st(f"v_lshl_add_u32 {self.ra}, {t}, 8, {u}")
        st(f"s_lshl_b32 s3, {wt}, 14")
        st(f"s_add_u32 s3, s3, {self.STG}")
        st(f"v_add_u32 {self.ra}, s3, {self.ra}")
        st(f"v_lshlrev_b32 {self.hgo}, 4, {self.hgo}")
        st(f"v_lshl_add_u32 {self.hgo}, {t}, 12, {self.hgo}")
        st(f"s_lshl_b32 {self.hso}, {self.c}, 19")
        st(f"s_lshl_b32 s3, {wt}, 18")
        st(f"s_add_u32 {self.hso}, {self.hso}, s3")
        st(f"s_lshl_b32 s3, {self.g}, 8")
        st(f"s_add_u32 {self.hso}, {self.hso}, s3")
        st(f"s_and_b32 s3, {w}, 1")
        st(f"s_lshl_b32 s3, s3, 7")
        st(f"s_add_u32 {self.hso}, {self.hso}, s3")
        tfree(k, st, t, u, wt)

    def final_scan(self, sc="sc0 sc1", extra=None):
        k = self.k
        extra = list(extra or [])
        PP, MM, H = self.PP, self.MM, self.H
        Ir, Ii = k.V(2, 2), k.V(2, 2)
        t1, t2 = self.t1, self.t2
        self.cfma(k, Ir, Ii, MM[0:2], MM[2:4], H, PP[0:2], PP[2:4], t1, t2)
        C = self.coef
        k(f"v_pk_mul_f32 {t1}, {Ii}, {C} op_sel:[0,1] op_sel_hi:[1,1] neg_lo:[0,1] neg_hi:[0,1]")
        k(f"v_pk_mul_f32 {t2}, {Ir}, {C} op_sel:[0,1] op_sel_hi:[1,1]")
        k(f"v_pk_fma_f32 {Ir}, {Ir}, {C}, {t1} {self.BC_LO}")
        k(f"v_pk_fma_f32 {Ii}, {Ii}, {C}, {t2} {self.BC_LO}")
        pk = [k.V(2, 1), k.V(2, 1)]
        wa = [k.V(), k.V()]
        rd = [k.V(4, 4), k.V(4, 4)]
        rr = k.V()
        def stage(step):
            zr, zi = self.zpair(0, step), self.zpair(1, step)
            p = pk[step & 1]; a = wa[step & 1]
            if step: k(f"v_xor_b32 {a}, {step << 4}, {self.sa}")
            else: a = self.sa
            k(f"v_cvt_pk_bf16_f32 {p[0]}, {zr[0]}, -{zi[0]}")
            k(f"v_cvt_pk_bf16_f32 {p[1]}, {zr[1]}, -{zi[1]}")
            k(f"ds_write2st64_b32 {a}, {p[0]}, {p[1]} offset0:{step} offset1:{16 + step}", "stg")
        def readback(i):
            a = self.ra
            if i:
                k(f"v_xor_b32 {rr}, {(2 * i) << 4}, {self.ra}"); a = rr
            k(f"ds_read_b128 {rd[i & 1]}, {a} offset:{512 * i}")
        def store(i):
            if i: k(f"s_add_u32 {self.hso}, {self.hso}, {2 * 4096}")
            k(f"buffer_store_dwordx4 {rd[i & 1]}, {self.hgo}, {self.srdH}, {self.hso} offen {sc}", "hst")
        ar, ai = Ir, Ii
        for step in range(16):
            zr, zi = self.zpair(0, step), self.zpair(1, step)
            self.cfma(k, zr, zi, ar, ai, self.lam, zr, zi, t1, t2)
            ar, ai = zr, zi
            if step > 0:
                stage(step - 1)
                s = step - 1
                if s & 1: readback(s >> 1)
                elif s >= 2: store((s >> 1) - 1)
            if extra: emit_op(k.E, extra.pop(0))
        stage(15)
        readback(7)
        emit_stream(k.E, extra)
        store(7)
        k.v.free(Ir, Ii, *pk, *wa, *rd, rr, self.sa, self.ra, self.hgo); k.s.free(self.hso)
        k.v.free(self.PP, self.MM, self.H, self.lam, self.coef, self.l128, self.t1, self.t2)
        for rt in range(2): k.v.free(*self.acc[rt])
        k.v.free(self.ploc); k.s.free(self.mask_hh)
```

```python
from common import *
from prep import hi_mask, lane16


class G3:
    NST = 16
    SLOT_BASE = [98304, 0, 32768, 65536]
    HI = 65536
    XB = 131072
    YB = 147456

    def __init__(self, k, lane, w, c, g, sc_in="sc0 sc1"):
        self.k, self.lane, self.w, self.c, self.g, self.sc_in = k, lane, w, c, g, sc_in

    def setup_c(self, st=None):
        k, w, g = self.k, self.w, self.g
        st = st or k
        r = self.srdC = k.S(4, 4); p = k.ptrs["ws"]
        st(f"s_lshl_b32 s3, {g}, 2")
        st(f"s_add_u32 s3, s3, {w}")
        st(f"s_lshl_b32 s3, s3, 16")
        st(f"s_add_u32 s3, s3, {WS_C}")
        atomic(st, f"s_add_u32 {r[0]}, {p[0]}, s3\ns_addc_u32 {r[1]}, {p[1]}, 0")
        st(f"s_mov_b32 {r[2]}, {64 * 1024}")
        st(f"s_mov_b32 {r[3]}, {SRD3}")
        self.l16 = lane16(k, self.lane)
        self.cso = k.S(name="cso")
        st(f"s_lshl_b32 {self.cso}, {g}, 12")
        self.res = [k.A(4, 4) for _ in range(64)]

    def c_load_ops(self):
        out = []
        for i in range(64):
            grp = []
            if i and (i & 3) == 0:
                grp.append((f"s_add_u32 {self.cso}, {self.cso}, 4096", None))
                grp.append((f"s_and_b32 {self.cso}, {self.cso}, 0xffff", None))
            grp.append((f"buffer_load_dwordx4 {self.res[i]}, {self.l16}, {self.srdC}, {self.cso} offen offset:{(i & 3) * 1024} {self.sc_in}", f"cf{i}"))
            out.append(grp)
        return out

    def setup_rowpat(self, st=None):
        k, lane = self.k, self.lane
        st = st or k
        self.voffH = k.V(4, 1)
        t = k.V(); u = k.V()
        st(f"v_lshrrev_b32 {t}, 4, {lane}")
        st(f"v_and_b32 {u}, 15, {lane}")
        st(f"v_xor_b32 {u}, {u}, {t}")
        st(f"v_lshlrev_b32 {u}, 4, {u}")
        st(f"v_lshl_add_u32 {self.voffH[0]}, {t}, 12, {u}")
        for i in range(1, 4):
            st(f"v_xor_b32 {t}, {64 * i}, {self.voffH[0]}")
            st(f"v_add_u32 {self.voffH[i]}, {4 * i * 4096}, {t}")
        tfree(k, st, t, u)

    def setup(self, st=None):
        k, lane, w, c, g = self.k, self.lane, self.w, self.c, self.g
        st = st or k
        self.srdH = k.get_srd("h", "ws", 8 << 20, WS_H, st)
        self.hbase = k.S(name="hbase"); self.kb = k.S(name="kb"); self.hk = k.S(2, 1, "hk"); self.m0b = k.S(name="g2m0")
        st(f"s_lshl_b32 {self.hbase}, {c}, 19")
        st(f"s_lshl_b32 s3, {w}, 17")
        st(f"s_add_u32 {self.hbase}, {self.hbase}, s3")
        st(f"s_lshl_b32 {self.kb}, {g}, 8")
        st(f"s_lshl_b32 {self.m0b}, {w}, 13")
        self.ad = [[[k.V() for kk in range(4)] for hi in range(2)] for s in range(2)]
        j = k.V(); t = k.V(); u = k.V(); kh = k.S()
        st(f"s_lshr_b32 {kh}, {w}, 1")
        st(f"v_and_b32 {j}, 31, {lane}")
        st(f"v_lshrrev_b32 {t}, 5, {lane}")
        st(f"v_lshlrev_b32 {t}, 2, {t}")
        st(f"s_lshl_b32 s3, {kh}, 3")
        st(f"v_add_u32 {t}, s3, {t}")
        st(f"v_and_b32 {u}, 15, {j}")
        st(f"v_xor_b32 {t}, {t}, {u}")
        st(f"v_lshlrev_b32 {t}, 4, {t}")
        st(f"v_lshl_add_u32 {t}, {j}, 8, {t}")
        st(f"s_lshl_b32 s3, {kh}, 14")
        st(f"v_add_u32 {t}, s3, {t}")
        for kk in range(4):
            st(f"v_xor_b32 {self.ad[0][0][kk]}, {16 * kk}, {t}")
            st(f"v_xor_b32 {self.ad[1][0][kk]}, 0x4000, {self.ad[0][0][kk]}")
            st(f"v_add_u32 {self.ad[0][1][kk]}, {self.HI}, {self.ad[0][0][kk]}")
            st(f"v_add_u32 {self.ad[1][1][kk]}, {self.HI}, {self.ad[1][0][kk]}")
        tfree(k, st, j, t, u, kh)

    def alloc_main(self):
        k = self.k
        self.fr = [[k.V(4, 4) for _ in range(4)] for _ in range(2)]
        self.acc = [k.V(16, 4) for _ in range(4)]

    def dma_ops(self, st):
        base = self.SLOT_BASE[st % 4]; ops = []
        for q in range(8):
            grp = []
            if q == 0:
                grp += [(f"s_add_u32 {self.kb}, {self.kb}, 256", None), (f"s_and_b32 {self.kb}, {self.kb}, 0xfff", None),
                        (f"s_add_u32 {self.hk[0]}, {self.hbase}, {self.kb}", None)]
            if q == 4: grp.append((f"s_add_u32 {self.hk[1]}, {self.hk[0]}, {16 * 4096}", None))
            grp += [(f"s_add_u32 m0, {self.m0b}, {base + 1024 * q}", None),
                    (f"buffer_load_dwordx4 {self.voffH[q & 3]}, {self.srdH}, {self.hk[q >> 2]} offen {self.sc_in} lds", f"g2st{st}")]
            ops.append(grp)
        return ops

    def prologue_h(self, lo, hi, st=None):
        st = st or self.k
        for s in range(lo, hi):
            for grp in self.dma_ops(s):
                atomic(st, "\n".join(t for t, _ in grp), grp[-1][1])

    def groups(self, st):
        if st < self.NST - 1:
            return [[(rb, kk) for rb in (0, 1, 2, 3)] for kk in range(4)]
        return [[(2, 0), (3, 0), (2, 1), (3, 1)], [(2, 2), (3, 2), (2, 3), (3, 3)],
                [(0, 0), (1, 0), (0, 1), (1, 1)], [(0, 2), (1, 2), (0, 3), (1, 3)]]

    def frag_reads(self, st, gi):
        base = self.SLOT_BASE[st % 4]; hi = 1 if base >= self.HI else 0
        off0 = base - (self.HI if hi else 0)
        out = []
        for n, (rb, kk) in enumerate(self.groups(st)[gi]):
            out.append((f"ds_read_b128 {self.fr[gi & 1][n]}, {self.ad[rb >> 1][hi][kk]} offset:{off0 + 8192 * (rb & 1)}", f"g2fr{st}_{gi}"))
        return out

    def mainloop(self, events=None, prebar=None, postbar=None, npre=2, stamp=None, nslot=5, last=None):
        k = self.k; E = k.E
        events = events or {}; prebar = prebar or {}; postbar = postbar or {}
        bg = []
        E.wait_all(vm=False)
        k("s_barrier")
        for t, tag in self.frag_reads(0, 0): k(t, tag)
        if stamp: stamp("g2_loop_start")
        pend = []
        for s2 in range(npre, 4): pend += self.dma_ops(s2)
        for st in range(self.NST):
            bg += list(events.get(st, []))
            if stamp and st in getattr(self, "stamp_at", ()): stamp(f"st{st}")
            grp = self.groups(st)
            for gi in range(4):
                fill = [[], [], [], []]; pre = [[], [], [], []]
                if gi < 3:
                    rd = self.frag_reads(st, gi + 1)
                    fill[0] += rd[0:2]; fill[1] += rd[2:4]
                else:
                    E.wait_tag(f"g2fr{st}_3")
                    if st + 1 < self.NST:
                        E.wait_tag(f"g2st{st + 1}")
                        if st in prebar: prebar[st]()
                        k("s_barrier")
                        if st in postbar: postbar[st]()
                        bg += list(events.get(st + 0.5, []))
                        rd = self.frag_reads(st + 1, 0)
                        fill[0] += rd[0:2]; fill[1] += rd[2:4]
                        nxt = st + 4
                        if nxt < self.NST: pend += self.dma_ops(nxt)
                n = 0
                while pend and n < 2:
                    op = pend.pop(0)
                    pre[2 + n] += op[:-1]; fill[2 + n].append(op[-1]); n += 1
                for i in range(4):
                    rb, kk = grp[gi][i]
                    for t, tag in pre[i]: k(t, tag)
                    first = st == 0 and kk == 0
                    cin = "0" if first else f"{self.acc[rb]}"
                    k(f"v_mfma_f32_32x32x16_bf16 {self.acc[rb]}, {self.fr[gi & 1][i]}, {self.res[4 * st + kk]}, {cin}")
                    for t, tag in fill[i]: k(t, tag)
                    nfill = len(fill[i]) + (len(pre[i + 1]) if i < 3 else 0)
                    for _ in range(max(nslot - nfill, 0)):
                        if bg: emit_op(E, bg.pop(0))
                    if last and st == self.NST - 1: last(gi, i)
        self.bg_left = len(bg)
        emit_stream(E, bg)
        if stamp: stamp("g2_loop_end")

    def epi_setup(self, st=None):
        k, lane, w, c, g = self.k, self.lane, self.w, self.c, self.g
        st = st or k
        self.srdX = k.get_srd("x", "x", SIZE["x"], 0, st)
        self.srdY = k.get_srd("y", "ws", 4 << 20, WS_Y, st)
        self.srdG = k.get_srd("g", "ws", 32768, WS_G, st)
        self.srdDk = k.get_srd("dskip", "dskip", SIZE["dskip"], 0, st)
        self.srdO = k.get_srd("out", "out", SIZE["out"], 0, st)
        self.hm = hi_mask(k)
        t = k.V(); u = k.V(); r = k.V(); kh = k.S(); cg = k.S()
        st(f"s_lshr_b32 {kh}, {w}, 1")
        st(f"s_and_b32 {cg}, {w}, 1")
        self.xo = k.V(); self.xs = k.S()
        st(f"v_bfe_u32 {t}, {lane}, 4, 1")
        st(f"v_lshlrev_b32 {t}, 2, {t}")
        st(f"v_and_b32 {u}, 7, {lane}")
        st(f"v_xor_b32 {u}, {u}, {t}")
        st(f"v_lshlrev_b32 {u}, 4, {u}")
        st(f"v_lshrrev_b32 {t}, 3, {lane}")
        st(f"v_lshl_add_u32 {self.xo}, {t}, 11, {u}")
        st(f"s_lshl_b32 {self.xs}, {c}, 18")
        st(f"s_lshl_b32 s3, {w}, 16")
        st(f"s_add_u32 {self.xs}, {self.xs}, s3")
        st(f"s_lshl_b32 s3, {g}, 7")
        st(f"s_add_u32 {self.xs}, {self.xs}, s3")
        self.ys = k.S()
        st(f"s_lshl_b32 {self.ys}, {g}, 18")
        st(f"s_lshl_b32 s3, {w}, 16")
        st(f"s_add_u32 {self.ys}, {self.ys}, s3")
        st(f"s_lshl_b32 s3, {c}, 8")
        st(f"s_add_u32 {self.ys}, {self.ys}, s3")
        self.xa = k.V()
        st(f"v_bfe_u32 {r}, {lane}, 2, 2")
        st(f"v_bfe_u32 {t}, {lane}, 4, 1")
        st(f"v_lshlrev_b32 {t}, 1, {t}")
        st(f"v_bfe_u32 {u}, {lane}, 1, 1")
        st(f"v_add_u32 {t}, {t}, {u}")
        st(f"s_lshl_b32 s3, {cg}, 2")
        st(f"v_add_u32 {t}, s3, {t}")
        st(f"v_bfe_u32 {u}, {lane}, 3, 1")
        st(f"v_lshlrev_b32 {u}, 2, {u}")
        st(f"v_xor_b32 {t}, {t}, {u}")
        st(f"v_lshlrev_b32 {t}, 4, {t}")
        st(f"v_and_b32 {u}, 1, {lane}")
        st(f"v_lshl_add_u32 {t}, {u}, 3, {t}")
        st(f"v_lshrrev_b32 {u}, 5, {lane}")
        st(f"v_lshl_add_u32 {r}, {u}, 2, {r}")
        st(f"v_lshl_add_u32 {t}, {r}, 7, {t}")
        st(f"s_lshl_b32 s3, {kh}, 13")
        st(f"s_add_u32 s3, s3, {self.XB}")
        st(f"v_add_u32 {self.xa}, s3, {t}")
        self.ya = k.V()
        st(f"v_and_b32 {t}, 15, {lane}")
        st(f"s_lshl_b32 s3, {kh}, 3")
        st(f"v_xor_b32 {t}, s3, {t}")
        st(f"v_lshlrev_b32 {t}, 4, {t}")
        st(f"v_and_b32 {r}, 31, {lane}")
        st(f"v_lshl_add_u32 {t}, {r}, 8, {t}")
        st(f"v_lshl_add_u32 {t}, {u}, 3, {t}")
        st(f"s_lshl_b32 s3, {cg}, 13")
        st(f"s_add_u32 s3, s3, {self.YB}")
        st(f"v_add_u32 {self.ya}, s3, {t}")
        self.gsrc = k.V(); self.ga = k.V()
        st(f"v_and_b32 {t}, 15, {lane}")
        st(f"v_lshlrev_b32 {t}, 4, {t}")
        st(f"v_and_b32 {r}, 16, {lane}")
        st(f"v_lshl_add_u32 {t}, {r}, 9, {t}")
        st(f"s_lshl_b32 s3, {c}, 9")
        st(f"v_add_u32 {t}, s3, {t}")
        st(f"s_lshl_b32 s3, {kh}, 8")
        st(f"v_add_u32 {self.gsrc}, s3, {t}")
        st(f"s_lshl_b32 s3, {w}, 10")
        st(f"s_add_u32 s3, s3, {self.YB}")
        st(f"v_lshl_add_u32 {self.ga}, {u}, 4, s3")
        self.dko = k.V(); self.oo = k.V(4, 1); self.os = k.S()
        st(f"v_and_b32 {t}, 31, {lane}")
        st(f"s_lshl_b32 s3, {cg}, 5")
        st(f"v_add_u32 {t}, s3, {t}")
        st(f"s_lshl_b32 s3, {g}, 6")
        st(f"v_add_u32 {t}, s3, {t}")
        st(f"v_lshlrev_b32 {self.dko}, 1, {t}")
        st(f"v_lshlrev_b32 {u}, 14, {u}")
        st(f"v_lshl_add_u32 {self.oo[0]}, {t}, 2, {u}")
        for i in range(1, 4):
            st(f"v_add_u32 {self.oo[i]}, {4096 * i}, {self.oo[0]}")
        st(f"s_lshl_b32 {self.os}, {c}, 19")
        st(f"s_lshl_b32 s3, {kh}, 18")
        st(f"s_add_u32 {self.os}, {self.os}, s3")
        tfree(k, st, t, u, r, kh, cg)
        self.m0x = k.S()
        st(f"s_lshl_b32 {self.m0x}, {w}, 12")

    def epi_x_dma(self, st):
        for i in range(4):
            atomic(st, f"s_add_u32 m0, {self.m0x}, {self.XB + 1024 * i}\n"
                       f"buffer_load_dwordx4 {self.xo}, {self.srdX}, {self.xs} offen lds", "xdma")
            if i < 3: st(f"s_add_u32 {self.xs}, {self.xs}, {8 * 2048}")
    def epi_y_dma(self, st):
        for i in range(4):
            atomic(st, f"s_add_u32 m0, {self.m0x}, {self.YB + 1024 * i}\n"
                       f"buffer_load_dwordx4 {self.voffH[i]}, {self.srdY}, {self.ys} offen {self.sc_in} lds", "ydma")
    def epi_g_dma(self, st):
        atomic(st, f"s_lshr_b32 s3, {self.m0x}, 2\ns_add_u32 m0, s3, {self.YB}\n"
                   f"buffer_load_dwordx4 {self.gsrc}, {self.srdG}, 0 offen {self.sc_in} lds", "gdma")
    def epi_dk_load(self, st):
        st(f"buffer_load_ushort {self.dk}, {self.dko}, {self.srdDk}, 0 offen")

    def epi_alloc(self):
        k = self.k
        self.G = [k.V(4, 2) for _ in range(8)]
        self.O = [k.V(4, 2) for _ in range(8)]
        self.dk = k.V()
        self.ex = [k.V(2, 2) for _ in range(2)]; self.ey = [k.V(2, 2) for _ in range(2)]
        self.et = k.V(8, 1); self.eya = k.V()

    def epi_g_reads(self, st):
        st.do(lambda E: E.wait_tag("gdma"))
        for i in range(8):
            off = (32 * (i >> 2) + 8 * (i & 3)) * 4
            st(f"ds_read_b128 {self.G[i]}, {self.ga} offset:{off}", "grd")
            st(f"ds_read_b128 {self.O[i]}, {self.ga} offset:{off + 256}", "grd")

    def epi_pre(self, st):
        t = self.et
        st(f"v_lshlrev_b32 {self.dk}, 16, {self.dk}")
        def reads(i):
            rt, blk = i >> 2, i & 3
            st(f"ds_read_b64_tr_b16 {self.ex[i & 1]}, {self.xa} offset:{(32 * rt + 8 * blk) * 128}")
            st(f"v_xor_b32 {self.eya}, {16 * i}, {self.ya}")
            st(f"ds_read_b64 {self.ey[i & 1]}, {self.eya}")
        reads(0)
        for i in range(8):
            ex, ey = self.ex[i & 1], self.ey[i & 1]
            G, O = self.G[i], self.O[i]
            for r in range(4):
                sh = (lambda d, s: f"v_and_b32 {d}, {self.hm}, {s}") if r & 1 else (lambda d, s: f"v_lshlrev_b32 {d}, 16, {s}")
                st(sh(t[r], ey[r >> 1]))
                st(sh(t[4 + r], ex[r >> 1]))
            if i < 7: reads(i + 1)
            for r in range(4): st(f"v_mul_f32 {O[r]}, {O[r]}, {t[r]}")
            for r in range(4): st(f"v_fmac_f32 {O[r]}, {G[r]}, {self.dk}")
            for r in range(4): st(f"v_mul_f32 {O[r]}, {O[r]}, {t[4 + r]}")

    def red_setup(self, st=None):
        k = self.k; st = st or k
        self.xw = k.V(); self.xr = k.V()
        st(f"s_lshl_b32 s3, {self.w}, 13")
        st(f"s_add_u32 s3, s3, {self.SLOT_BASE[0]}")
        st(f"v_add_u32 {self.xw}, s3, {self.l16}")
        st(f"v_xor_b32 {self.xr}, 0x4000, {self.xw}")
    def red_write(self, q):
        a = self.acc[2 + (q >> 2)]
        self.k(f"ds_write_b128 {self.xw}, {a[4 * (q & 3):4 * (q & 3) + 4]} offset:{1024 * q}", "xw")
    def final(self):
        k = self.k; E = k.E
        E.wait_tag("xw")
        k("s_barrier")
        R = [self.fr[q >> 2][q & 3] for q in range(8)]
        for q in range(8):
            k(f"ds_read_b128 {R[q]}, {self.xr} offset:{1024 * q}")
        for i in range(8):
            rt, blk = i >> 2, i & 3
            a = self.acc[rt]
            for r in range(4): k(f"v_add_f32 {a[4 * blk + r]}, {a[4 * blk + r]}, {R[i][r]}")
            for r in range(4): k(f"v_fma_f32 {a[4 * blk + r]}, {self.G[i][r]}, {a[4 * blk + r]}, {self.O[i][r]}")
            if i: k(f"s_add_u32 {self.os}, {self.os}, {8 * 4096}")
            for r in range(4):
                k(f"buffer_store_dword {a[4 * blk + r]}, {self.oo[r]}, {self.srdO}, {self.os} offen", "ost")
```

```python
from common import *
from prep import hi_mask, lane16, PrepGate


class PrepKV4:
    def __init__(self, k, lane, w, c, g, wb, sc="sc0 sc1", nt="nt"):
        self.k, self.lane, self.w, self.c, self.g, self.WB, self.sc, self.nt = k, lane, w, c, g, wb, sc, nt

    def setup_v(self):
        k, lane, w, c, g = self.k, self.lane, self.w, self.c, self.g
        self.vk = k.V(); t = k.V(); u = k.V()
        k(f"v_bfe_u32 {t}, {lane}, 3, 2")
        k(f"v_lshrrev_b32 {u}, 5, {lane}")
        k(f"v_lshlrev_b32 {u}, 2, {u}")
        k(f"v_lshl_add_u32 {t}, {t}, 3, {u}")
        k(f"v_and_b32 {u}, 7, {lane}")
        k(f"v_lshlrev_b32 {u}, 4, {u}")
        k(f"v_lshl_add_u32 {self.vk}, {t}, 11, {u}")
        s = k.S()
        k(f"s_lshl_b32 {s}, {c}, 7")
        k(f"s_lshl_b32 s3, {w}, 5")
        k(f"s_add_u32 {s}, {s}, s3")
        k(f"s_lshl_b32 {s}, {s}, 11")
        k(f"s_lshl_b32 s3, {g}, 7")
        k(f"s_add_u32 {s}, {s}, s3")
        k(f"v_add_u32 {self.vk}, {s}, {self.vk}")
        k.s.free(s); k.v.free(t, u)
        self.kr = [k.V(4, 2) for _ in range(7)]
        self.vr = [k.V(4, 2) for _ in range(4)]
        for i in range(3):
            k(f"v_subrev_u32 {self.kr[i][0]}, {2048 * (3 - i)}, {self.vk}")
            k(f"v_min_u32 {self.kr[i][0]}, 0x7fff0000, {self.kr[i][0]}")
        self.s4096 = k.S(); self.sw = k.S()
        k(f"s_mov_b32 {self.s4096}, 4096")
        k(f"s_lshl_b32 {self.sw}, {g}, 9")
        self.l16 = lane16(k, lane)

    def loads(self):
        k = self.k; w = self.w
        srdW = k.make_srd("shk", "shk", SIZE["shk"]); srdK = k.make_srd("k", "k", SIZE["k"]); srdV = k.make_srd("v", "v", SIZE["v"])
        k(f"s_lshl_b32 s3, {w}, 10")
        k(f"s_add_u32 m0, s3, {self.WB}")
        k(f"buffer_load_dwordx4 {self.l16}, {srdW}, {self.sw} offen lds", "wdma")
        for i in range(7):
            if i < 3: k(f"buffer_load_dwordx4 {self.kr[i]}, {self.kr[i][0]}, {srdK}, 0 offen {self.nt}")
            else:
                r = i - 3
                so = "0" if r < 2 else self.s4096
                k(f"buffer_load_dwordx4 {self.kr[i]}, {self.vk}, {srdK}, {so} offen offset:{2048 * (r & 1)} {self.nt}")
        for r in range(4):
            so = "0" if r < 2 else self.s4096
            k(f"buffer_load_dwordx4 {self.vr[r]}, {self.vk}, {srdV}, {so} offen offset:{2048 * (r & 1)} {self.nt}")
        k.free_srd("shk", "k", "v"); k.free_ptrs("shk", "k", "v")
        k.s.free(self.s4096, self.sw); k.v.free(self.vk)

    def setup2(self):
        k, lane, w, c, g = self.k, self.lane, self.w, self.c, self.g
        self.srdU = k.get_srd("u", "ws", 4 << 20, WS_U)
        self.hm = hi_mask(k)
        t = k.V(); u = k.V()
        self.wa = k.V(); self.go = k.V(); self.so = k.S()
        k(f"v_and_b32 {t}, 7, {lane}")
        k(f"s_lshl_b32 s3, {w}, 10")
        k(f"s_add_u32 s3, s3, {self.WB}")
        k(f"v_lshl_add_u32 {self.wa}, {t}, 6, s3")
        k(f"v_bfe_u32 {t}, {lane}, 2, 1")
        k(f"v_lshlrev_b32 {t}, 3, {t}")
        k(f"v_lshrrev_b32 {u}, 5, {lane}")
        k(f"v_add_u32 {t}, {t}, {u}")
        k(f"v_lshlrev_b32 {self.go}, 14, {t}")
        k(f"v_bfe_u32 {t}, {lane}, 3, 2")
        k(f"v_sub_u32 {t}, 3, {t}")
        k(f"v_lshl_add_u32 {self.go}, {t}, 6, {self.go}")
        k(f"v_and_b32 {t}, 3, {lane}")
        k(f"v_lshl_add_u32 {self.go}, {t}, 4, {self.go}")
        k(f"s_lshl_b32 {self.so}, {g}, 18")
        k(f"s_add_u32 {self.so}, {self.so}, {252 * 64}")
        k(f"s_lshl_b32 s3, {c}, 10")
        k(f"s_sub_u32 {self.so}, {self.so}, s3")
        k(f"s_lshl_b32 s3, {w}, 8")
        k(f"s_sub_u32 {self.so}, {self.so}, s3")
        k.v.free(t, u)
        self.W2 = [k.V(4, 4) for _ in range(2)]
        self.W = k.V(4, 1); self.KK = k.V(7, 1); self.U = k.V(4, 1)
        self.Q = [k.V(4, 2) for _ in range(4)]

    def unpack(self, st, dst, src, hi):
        if hi: st(f"v_and_b32 {dst}, {self.hm}, {src}")
        else: st(f"v_lshlrev_b32 {dst}, 16, {src}")

    def compute(self, st):
        W, KK, U = self.W, self.KK, self.U
        def swaps(i):
            q = self.Q[i]
            st(f"v_permlane32_swap_b32 {q[2]}, {q[0]}")
            st(f"v_permlane32_swap_b32 {q[3]}, {q[1]}")
        st.do(lambda E: E.wait_tag("wdma"))
        st(f"ds_read_b128 {self.W2[0]}, {self.wa} offset:0")
        for e in range(8):
            i = e >> 1
            if (e & 1) == 0 and i < 3: st(f"ds_read_b128 {self.W2[(i + 1) & 1]}, {self.wa} offset:{16 * (i + 1)}")
            w2 = self.W2[i & 1]
            d0, d1 = w2[2 * (e & 1)], w2[2 * (e & 1) + 1]
            for j in range(7):
                self.unpack(st, KK[j], self.kr[j][e >> 1], e & 1)
                if j == 1 and e >= 2 and (e & 1) == 0: swaps(i - 1)
            self.unpack(st, W[3], d1, 1); self.unpack(st, W[2], d1, 0)
            self.unpack(st, W[1], d0, 1); self.unpack(st, W[0], d0, 0)
            for r in range(4):
                st(f"v_mul_f32 {U[r]}, {W[3]}, {KK[r]}")
            for j in (2, 1, 0):
                for r in range(4):
                    st(f"v_fmac_f32 {U[r]}, {W[j]}, {KK[r + 3 - j]}")
            for r in range(4):
                self.unpack(st, KK[r], self.vr[r][e >> 1], e & 1)
            for r in range(4):
                st(f"v_mul_f32 {U[r]}, {U[r]}, {KK[r]}")
            P = self.Q[i][0:2] if e & 1 else self.Q[i][2:4]
            st(f"v_cvt_pk_bf16_f32 {P[0]}, {U[3]}, {U[2]}")
            st(f"v_cvt_pk_bf16_f32 {P[1]}, {U[1]}, {U[0]}")
        swaps(3)

    def stores(self, st):
        for i in range(4):
            if i: st(f"s_add_u32 {self.so}, {self.so}, 32768")
            st(f"buffer_store_dwordx4 {self.Q[i]}, {self.go}, {self.srdU}, {self.so} offen {self.sc}", "ust")

    def free(self):
        k = self.k
        k.v.free(*self.kr, *self.vr, self.wa, self.go, *self.W2, self.W, self.KK, self.U, *self.Q)
        k.s.free(self.so)


class PrepC4:
    def __init__(self, k, lane, w, c, g, sc="sc0 sc1", nt="nt"):
        self.k, self.lane, self.w, self.c, self.g, self.sc, self.nt = k, lane, w, c, g, sc, nt
    def setup(self, st=None):
        k, lane, w, c, g = self.k, self.lane, self.w, self.c, self.g
        st = st or k
        self.srdR = k.make_srd("cre", "cre", SIZE["cre"], 0, st); self.srdI = k.make_srd("cim", "cim", SIZE["cim"], 0, st)
        self.srdD = k.make_srd("cf", "ws", 4 << 20, WS_C, st)
        self.src = k.V(); t = k.V()
        st(f"v_and_b32 {t}, 31, {lane}")
        st(f"v_lshlrev_b32 {self.src}, 11, {t}")
        st(f"v_lshrrev_b32 {t}, 5, {lane}")
        st(f"v_lshl_add_u32 {self.src}, {t}, 5, {self.src}")
        self.ss = k.S(); self.sd = k.S()
        st(f"s_lshl_b32 {self.ss}, {g}, 17")
        st(f"s_and_b32 s3, {w}, 1")
        st(f"s_lshl_b32 s3, s3, 16")
        st(f"s_add_u32 {self.ss}, {self.ss}, s3")
        st(f"s_lshl_b32 s3, {c}, 7")
        st(f"s_add_u32 {self.ss}, {self.ss}, s3")
        st(f"s_lshr_b32 s3, {w}, 1")
        st(f"s_lshl_b32 s3, s3, 6")
        st(f"s_add_u32 {self.ss}, {self.ss}, s3")
        st(f"s_lshl_b32 {self.sd}, {g}, 2")
        st(f"s_add_u32 {self.sd}, {self.sd}, {w}")
        st(f"s_lshl_b32 {self.sd}, {self.sd}, 16")
        st(f"s_lshl_b32 s3, {c}, 12")
        st(f"s_add_u32 {self.sd}, {self.sd}, s3")
        self.l16 = lane16(k, lane)
        self.selo = k.S(); self.sehi = k.S()
        st(f"s_mov_b32 {self.selo}, 0x05040100")
        st(f"s_mov_b32 {self.sehi}, 0x07060302")
        tfree(k, st, t)
    def alloc(self):
        k = self.k
        self.re = k.V(8, 2); self.im = k.V(8, 2)
    def loads(self, st):
        for dst, srd in ((self.re, self.srdR), (self.im, self.srdI)):
            for h in range(2):
                st(f"buffer_load_dwordx4 {dst[4 * h:4 * h + 4]}, {self.src}, {srd}, {self.ss} offen offset:{16 * h} {self.nt}")
    def convert_store(self, st):
        k = self.k
        self.o = [k.V(4, 2) for _ in range(2)]
        for kk in range(4):
            o = self.o[kk & 1]
            for h in range(2):
                st(f"v_perm_b32 {o[2 * h]}, {self.im[2 * kk + h]}, {self.re[2 * kk + h]}, {self.selo}")
                st(f"v_perm_b32 {o[2 * h + 1]}, {self.im[2 * kk + h]}, {self.re[2 * kk + h]}, {self.sehi}")
            st(f"buffer_store_dwordx4 {o}, {self.l16}, {self.srdD}, {self.sd} offen offset:{1024 * kk} {self.sc}", "cst")
    def free(self):
        k = self.k
        k.v.free(self.src, self.re, self.im, *self.o); k.s.free(self.ss, self.sd, self.selo, self.sehi)
        k.free_srd("cre", "cim", "cf"); k.free_ptrs("cre", "cim")
```

```python
import sys
from g1b import *
from prepb import *
from convb import *
from g3 import *

L_W = 156672
LDS_BYTES = 163840


def build(name=KNAME, stamps=(), opt=None):
    opt = opt or {}
    o = lambda n, d: opt.get(n, d)
    k = K(name, nv=256, na=256)
    E = k.E
    k("s_cmp_ge_u32 s2, 256")
    k("s_cbranch_scc1 Lend_" + name)
    k.load_all_ptrs()
    k.free_ptrs("q")
    N = Nonce(k, None, late=True)
    ST = Stamps(k, bool(stamps), len(stamps))
    ST.realtime = bool(o("dbgst", 0))
    def st(nm):
        if nm in stamps: ST(nm)
    lane, w = wave_ids(k)
    N.w = w
    c, g = tile_ids(k)
    st("start"); st("rt0")
    ntk = "nt" if o("ntk", 1) else ""

    G = G1B(k, lane, w, c, g, st)
    zi = G.zero_init()
    G.setup_dma_v(); G.setup_dma_s()
    P = PrepKV4(k, lane, w, c, g, L_W, nt=ntk)
    P.setup_v()
    l16 = lane16(k, lane)
    G.setup_dma_srds("nt" if o("ntx", 0) else "", "nt" if o("ntb", 0) else "")
    k.free_ptrs("x")
    E.wait_tag("zi")
    k.v.free(*zi)
    st("p0")
    G.prologue_stage(0)
    st("p1")
    P.loads()
    st("p2")
    for s in range(1, 4):
        G.prologue_stage(s); st(f"p{s + 2}")
    st("dma_issued")
    N.alloc(); N.publish(have_time=True)
    k.free_ptrs("dbg")
    hm = hi_mask(k)
    vz = k.V(name="vz"); k(f"v_mov_b32 {vz}, 0")
    G.params_load()
    G.setup_frag()
    P.setup2()
    F = Flags(k, N.n)
    fv = k.V(2, 2, "fv")
    s_fu = k.S(); s_fc = k.S(); vpoll = k.V()
    k(f"s_lshl_b32 {s_fu}, {g}, 4\ns_add_u32 {s_fu}, {s_fu}, {c}\ns_lshl_b32 {s_fu}, {s_fu}, 2\ns_add_u32 {s_fu}, {s_fu}, {w}")
    k(f"s_lshl_b32 {s_fu}, {s_fu}, 3\ns_add_u32 {s_fu}, {s_fu}, {F4_U}")
    k(f"s_lshl_b32 {s_fc}, {g}, 2\ns_add_u32 {s_fc}, {s_fc}, {w}\ns_lshl_b32 {s_fc}, {s_fc}, 4\ns_add_u32 {s_fc}, {s_fc}, {c}")
    k(f"s_lshl_b32 {s_fc}, {s_fc}, 3\ns_add_u32 {s_fc}, {s_fc}, {F4_C}")
    k(f"s_lshl_b32 s3, {g}, 9\ns_add_u32 s3, s3, {F4_U}")
    k(f"v_lshrrev_b32 {vpoll}, 1, {l16}\nv_add_u32 {vpoll}, s3, {vpoll}")
    CV = ConvB(k, lane, w, c, g, nt=ntk)
    CV.setup_k()
    k.free_ptrs("ssk", "ssd")
    C = PrepC4(k, lane, w, c, g, nt=ntk)
    GT = PrepGate(k, lane, w, c, g); GT.setup()
    k.free_ptrs("gw")

    ev = {}
    def S(x):
        return ev.setdefault(x, Stream())
    kv0 = o("kv0", 1)
    s0 = S(kv0)
    P.compute(s0); P.stores(s0)
    N.load(S(o("nld", 4)))
    P.free()
    GT.alloc()
    GT.loads(s0)
    G.params_compute(s0)
    GT.compute(S(o("gtc", 8))); GT.store(S(o("gtc", 8)))
    sp = S(o("pubu", 8.5))
    sp.do(lambda E: N.get())
    sp.do(lambda E: E.wait_tag("ust"))
    F.publish(sp, fv, vz, s_fu, "pubf")
    GT.free()
    G.params_free_tmp()
    C.setup(S(o("csetup", 10)))
    F.load(S(o("pollu", 11)), fv, vpoll)
    C.alloc()
    C.loads(S(o("cl", 11.5)))
    su = S(o("udma", 12.5))
    CV.k_alloc(su)
    su.do(lambda E: F.check(fv, vpoll))
    CV.u_dma(su)
    CV.k_loads(su)
    C.convert_store(S(o("cs", 13.5)))
    CV.setup_frag(S(o("cs", 13.5)))
    s15 = S(14.5)
    s15.do(lambda E: E.wait_tag("udma"))
    CV.k_build(s15)
    G.stamp_at = range(16)
    G.verbose = o("verbose", 0)
    n1 = o("ns1", 7); n2 = o("ns2", 5); n3 = o("ns3", 6)
    nsl = [n2] + [n1] * 5 + [n2] * 6 + [n3] * 4
    for s in range(16):
        if f"ns_{s}" in opt: nsl[s] = opt[f"ns_{s}"]
    G.mainloop(events=ev, nslot=nsl)
    if G.bg_left: print("G1 background ops left over:", G.bg_left)
    for s in ev.values(): s.release(k)
    G.free_loop()
    C.free(); CV.k_free(); CV.u_free()
    k.s.free(s_fu)

    G.horner()
    E.wait_all(vm=False)
    k("s_barrier")
    G.combine()
    G.publish_S(N.n)
    st("published")

    G3_ = G3(k, lane, w, c, g)
    b1 = Stream()
    G.carry_setup(b1)
    b1.do(lambda E: E.wait_tag("cst", "gst"))
    F.publish(b1, fv, vz, s_fc, "pubf")
    sz = Stream(); G.scale_z_plain(sz)
    nz = o("nz", 64)
    b1 += sz[:nz]
    G.carry_loads(b1)
    b1(f"s_lshl_b32 s3, {g}, 2\ns_add_u32 s3, s3, {w}\ns_lshl_b32 s3, s3, 7\ns_add_u32 s3, s3, {F4_C}")
    b1(f"v_and_b32 {vpoll}, 15, {lane}\nv_lshlrev_b32 {vpoll}, 3, {vpoll}\nv_add_u32 {vpoll}, s3, {vpoll}")
    F.load(b1, fv, vpoll)
    b1 += sz[nz:]
    G.hstore_setup(b1)
    G3_.setup_c(b1)
    cl = G3_.c_load_ops()
    E.wait_tag("kcw")
    nr1 = o("nr1", 3)
    if o("dbg", 0): print("before conv1 free", k.v.nfree(), k.v.used_map())
    CV.groups(range(0, nr1), bg=b1, npool=o("np1", 13), per_slot=o("ps1", 2))
    b1.release(k)
    k.s.free(s_fc)
    st("conv1")

    G.carry()
    F.check(fv, vpoll)
    st("carry")
    ncs = o("ncs", 8)
    ex = Stream()
    for grp in cl[:ncs]: atomic(ex, "\n".join(t for t, _ in grp), grp[-1][1])
    G.final_scan(extra=ex)
    st("hstored")

    b2 = Stream()
    s_hf = k.S(); s_yf = k.S()
    nc2 = o("nc2", 40); na = o("nc2a", 24)
    rest = cl[ncs:]
    def cload(stream, grps, gap=0):
        for grp in grps:
            atomic(stream, "\n".join(t for t, _ in grp), grp[-1][1])
    setup = Stream()
    setup(f"s_lshl_b32 {s_hf}, {c}, 4\ns_add_u32 {s_hf}, {s_hf}, {g}\ns_lshl_b32 {s_hf}, {s_hf}, 2\ns_add_u32 {s_hf}, {s_hf}, {w}")
    setup(f"s_lshl_b32 {s_hf}, {s_hf}, 3\ns_add_u32 {s_hf}, {s_hf}, {F4_H}")
    setup(f"s_lshl_b32 {s_yf}, {g}, 4\ns_add_u32 {s_yf}, {s_yf}, {c}\ns_lshl_b32 {s_yf}, {s_yf}, 2\ns_add_u32 {s_yf}, {s_yf}, {w}")
    setup(f"s_lshl_b32 {s_yf}, {s_yf}, 3\ns_add_u32 {s_yf}, {s_yf}, {F4_Y}")
    setup(f"s_lshl_b32 s3, {c}, 9\ns_add_u32 s3, s3, {F4_H}")
    setup(f"v_lshrrev_b32 {vpoll}, 1, {l16}\nv_add_u32 {vpoll}, s3, {vpoll}")
    G3_.setup_rowpat(setup); G3_.setup(setup)
    gap = o("cgap", 3)
    sl = list(setup); b2.held = setup.held
    i = 0
    nop = lambda E: None
    for n, grp in enumerate(rest[:nc2]):
        cload(b2, [grp])
        for _ in range(gap - 1):
            if sl: b2.append(sl.pop(0))
            else: b2.do(nop)
        if n + 1 == na:
            b2 += sl; sl = []
            b2.do(lambda E: E.wait_tag("hst", "gst"))
            F.publish(b2, fv, vz, s_hf, "hflag")
    b2 += sl
    if o("pollh_in", 1): F.load(b2, fv, vpoll)
    CV.groups(range(nr1, 8), bg=b2, per_slot=o("ps2", 1))
    b2.release(k)
    st("conv2")
    E.wait_all(vm=False)
    k("s_barrier")
    if not o("pollh_in", 1): F.load(k, fv, vpoll)
    if o("epi_first", 0):
        CV.epilogue(); CV.epilogue_free()
    F.check(fv, vpoll)
    k.s.free(s_hf)
    G3_.prologue_h(1, o("npre", 3))
    st("hflags")
    if not o("epi_first", 0):
        CV.epilogue(); CV.epilogue_free()
    k.s.free(CV.d, CV.rowoff)
    k.free_srd("u")

    G3_.alloc_main()
    e2 = {s: Stream() for s in range(16)}
    G3_.epi_setup(e2[0]); G3_.epi_alloc(); G3_.red_setup(e2[0])
    k.free_ptrs("dskip", "out")
    fy = k.V(2, 2)
    e2[0](f"s_lshl_b32 s3, {g}, 9\ns_add_u32 s3, s3, {F4_Y}")
    e2[0](f"v_lshrrev_b32 {vpoll}, 1, {l16}\nv_add_u32 {vpoll}, s3, {vpoll}")
    G3_.epi_x_dma(e2[1]); G3_.epi_g_dma(e2[1]); G3_.epi_dk_load(e2[1])
    sy = o("yflag", 2)
    e2[sy].do(lambda E: E.wait_tag("yst"))
    F.publish(e2[sy], fv, vz, s_yf, "yflag")
    G3_.epi_g_reads(e2[4])
    F.load(e2[o("ypoll", 6)], fy, vpoll)
    sc_ = o("ychk", 8)
    e2[sc_].do(lambda E: F.check(fy, vpoll))
    G3_.epi_y_dma(e2[sc_])
    G3_.epi_pre(e2[o("epre", 11)])
    late = rest[nc2:]
    lat = Stream(); cload(lat, late)
    e2[0][0:0] = list(lat)
    G3_.stamp_at = range(16)
    def last(gi, i):
        if gi >= 2: G3_.red_write(4 * (gi - 2) + i)
    G3_.mainloop(events=e2, npre=o("npre", 3), stamp=st, prebar={o("epre", 11) - 1: (lambda: E.wait_tag("xdma", "ydma"))}, last=last,
                 nslot=o("ns_g3", 5))
    if G3_.bg_left: print("G3 background ops left over:", G3_.bg_left)
    G3_.final()
    st("stored")
    if stamps:
        E.wait_all()
        st("drained"); st("rt1")
        if o("dbgst", 0): ST.flush_dbg(N.srd)
        else: ST.flush(0)
    E.label("Lend_" + name)
    k("s_endpgm")
    return k, ST


if __name__ == "__main__":
    args = sys.argv[1:]
    out = [a for a in args if a.endswith(".s")]
    stamps = ()
    opt = {}
    for a in args:
        if a.startswith("st="): stamps = tuple(a[3:].split(","))
        elif "=" in a and not a.endswith(".s"):
            kk, vv = a.split("="); opt[kk] = float(vv) if "." in vv else int(vv)
    k, ST = build(stamps=stamps, opt=opt)
    t = file_text([(k.name, 256, 256, LDS_BYTES)], [kernel_text(k)])
    open(out[0] if out else "v4.s", "w").write(t)
    print(k.name, "vgprs", k.v.high, "agprs", k.a.high, "sgprs", k.s.high, "instrs", k.E.n_ins, "nops", k.E.n_nop, "bytes", len(t))
    print(",".join(ST.names))
```

```python
from asm import *

KA = dict(x=0, lre=8, lim=16, bre=24, bim=32, cre=40, cim=48, logdt=56, dskip=64, q=72, k=80, v=88,
          shk=96, ssk=104, ssd=112, gw=120, out=128, dbg=136, ws=144)
SIZE = dict(x=4 << 20, lre=2048, lim=2048, bre=2 << 20, bim=2 << 20, cre=2 << 20, cim=2 << 20, logdt=2048, dskip=2048,
            k=4 << 20, v=4 << 20, shk=8192, ssk=4 << 20, ssd=2048, gw=2048, out=8 << 20, dbg=256, ws=256 << 20)

WS_H = 0
WS_U = 8 << 20
WS_Y = 12 << 20
WS_C = 16 << 20
WS_G = 20 << 20
WS_S = (20 << 20) + 65536
WS_F = (20 << 20) + (512 << 10)
WS_T = 22 << 20
WS_X = 24 << 20
F_PU = 0
F_PC = 8192
F_H = 16384
F_Y = 24576
F_X = 32768
F_SIZE = 40960
F4_U = 0
F4_C = 8192
F4_H = 16384
F4_Y = 24576
WS_DUMP = 32 << 20
SENTINEL = 0xFFFFFFFF
KNAME = "gated_mix__ssm_conv_s5__ssm_conv_h3__prompt_kernel"
SRD3 = 0x00020000


class K:
    def __init__(self, name, nv=256, na=0):
        self.name = name
        self.E = Emitter(); self.E.prefix = name[:4] + "_"
        self.v = Alloc("v", 1, nv)
        self.a = Alloc("a", 0, max(na, 1))
        self.s = Alloc("s", 4, 100)
        self.nv, self.na = nv, na
        self.srds = {}
        self.ptrs = {}
    def __call__(self, text, tag=None):
        self.E(text, tag)
    def V(self, n=1, align=None, name=None): return self.v.alloc(n, align, name)
    def S(self, n=1, align=None, name=None): return self.s.alloc(n, align, name)
    def A(self, n=1, align=None, name=None): return self.a.alloc(n, align, name)

    def load_ptrs(self, names):
        for n in names:
            if n not in self.ptrs:
                p = self.S(2, 2); self.ptrs[n] = p
                self(f"s_load_dwordx2 {p}, s[0:1], {KA[n]}")
    def load_all_ptrs(self):
        a = self.S(16, 4); b = self.S(16, 4); c = self.S(4, 4); d = self.S(2, 2)
        self(f"s_load_dwordx16 {a}, s[0:1], 0")
        self(f"s_load_dwordx16 {b}, s[0:1], 64")
        self(f"s_load_dwordx4 {c}, s[0:1], 128")
        self(f"s_load_dwordx2 {d}, s[0:1], 144")
        for n, off in KA.items():
            if off < 64: self.ptrs[n] = a[off // 4:off // 4 + 2]
            elif off < 128: self.ptrs[n] = b[(off - 64) // 4:(off - 64) // 4 + 2]
            elif off < 144: self.ptrs[n] = c[(off - 128) // 4:(off - 128) // 4 + 2]
            else: self.ptrs[n] = d
    def free_ptrs(self, *names):
        for n in names: self.s.free(self.ptrs.pop(n))
    def make_srd(self, key, ptr, size, off=0, st=None):
        st = st or self
        r = self.S(4, 4)
        if ptr not in self.ptrs:
            assert off == 0
            st(f"s_load_dwordx2 {r[0:2]}, s[0:1], {KA[ptr]}")
        else:
            p = self.ptrs[ptr]
            if off:
                atomic(st, f"s_add_u32 {r[0]}, {p[0]}, {off}\ns_addc_u32 {r[1]}, {p[1]}, 0")
            else:
                st(f"s_mov_b32 {r[0]}, {p[0]}")
                st(f"s_mov_b32 {r[1]}, {p[1]}")
        st(f"s_mov_b32 {r[2]}, {size}")
        st(f"s_mov_b32 {r[3]}, {SRD3}")
        self.srds[key] = r
        return r
    def get_srd(self, key, ptr, size, off=0, st=None):
        return self.srds.get(key) or self.make_srd(key, ptr, size, off, st)
    def free_srd(self, *keys):
        for key in keys: self.s.free(self.srds.pop(key))


def kernel_text(k, vgpr_total=None, accum=None):
    nv = k.v.high
    accum = accum or ((nv + 3) // 4 * 4)
    na = k.a.high if k.na else 0
    total = vgpr_total or (accum + na)
    ns = max(k.s.high, 16)
    body = k.E.text()
    return f""".text
.globl {k.name}
.p2align 8
.type {k.name},@function
{k.name}:
{body}
.section .rodata,"a"
.p2align 6
.amdhsa_kernel {k.name}
  .amdhsa_next_free_vgpr {total}
  .amdhsa_next_free_sgpr {ns}
  .amdhsa_accum_offset {accum}
  .amdhsa_group_segment_fixed_size 0
  .amdhsa_kernarg_size 152
  .amdhsa_user_sgpr_count 2
  .amdhsa_user_sgpr_kernarg_segment_ptr 1
  .amdhsa_system_sgpr_workgroup_id_x 1
  .amdhsa_float_denorm_mode_32 3
.end_amdhsa_kernel
"""

HEADER_ARGS = open(__file__.replace("common.py", "header.txt")).read()

def file_text(launches, kernels):
    out = HEADER_ARGS
    if len(launches) == 1 and launches[0][0] == KNAME:
        n, g, b, l = launches[0]
        out += f"; @launch grid=({g},1,1) block=({b},1,1) lds={l}\n"
    else:
        for n, g, b, l in launches:
            out += f"; @launch kernel={n} grid=({g},1,1) block=({b},1,1) lds={l}\n"
    out += '.amdgcn_target "amdgcn-amd-amdhsa--gfx950"\n'
    for t in kernels:
        out += t
    return out


class Stamps:
    def __init__(self, k, enable=True, n=0):
        self.k, self.names, self.regs, self.enable = k, [], [], enable
        self.pre = [k.S(2, 2) for _ in range(n)]
    realtime = False
    def __call__(self, name):
        if not self.enable: return
        r = self.pre.pop(0) if self.pre else self.k.S(2, 2)
        self.names.append(name); self.regs.append(r)
        self.k(f"s_memrealtime {r}" if (name.startswith("rt") or self.realtime) else f"s_memtime {r}")
    def flush_dbg(self, srd):
        k = self.k
        k.E.wait_all()
        t = k.V(); o = k.V()
        k("s_mov_b64 exec, 1")
        for i, r in enumerate(self.regs):
            k(f"v_mov_b32 {t}, {r[0]}\nv_mov_b32 {o}, {8 + 4 * i}")
            k(f"buffer_atomic_umax {t}, {o}, {srd}, 0 offen")
            k("s_nop 1")
        k.E.wait_all()
    def flush(self, slot=0):
        if not self.enable: return
        k = self.k
        k.E.wait_all()
        srd = k.make_srd("stamps", "ws", 1 << 20, WS_T + slot * 65536 * 4)
        t = k.V(2, 2); o = k.V()
        k(f"v_lshrrev_b32 {o}, 6, v0")
        k(f"v_lshlrev_b32 {o}, 8, {o}")
        k(f"s_lshl_b32 s3, s2, 10")
        k(f"v_add_u32 {o}, s3, {o}")
        for i, r in enumerate(self.regs):
            k(f"v_mov_b32 {t[0]}, {r[0]}\nv_mov_b32 {t[1]}, {r[1]}")
            k(f"buffer_store_dwordx2 {t}, {o}, {srd}, 0 offen offset:{8 * i}")
            k("s_nop 1")
        k.E.wait_all()


class Nonce:
    def __init__(self, k, w, late=False):
        self.k, self.w = k, w
        self.n = k.S(2, 2, "nonce")
        if late: k(f"s_memrealtime {self.n}", "nt")
        else: self.alloc()
    def alloc(self):
        k = self.k
        self.srd = k.get_srd("dbg", "dbg", 256)
        self.v = k.V(2, 2); self.z = k.V()
    def publish(self, have_time=False):
        k = self.k
        lab = k.E.newlabel("Lnonce")
        if have_time: k.E.wait_tag("nt")
        snap = k.E.snapshot()
        k(f"s_or_b32 s3, s2, {self.w}")
        k(f"s_cmp_lg_u32 s3, 0")
        k(f"s_cbranch_scc1 {lab}")
        if not have_time:
            k(f"s_memrealtime {self.n}", "nt")
            k.E.wait_tag("nt")
        k(f"v_mov_b32 {self.v[0]}, {self.n[0]}\nv_mov_b32 {self.v[1]}, {self.n[1]}\nv_mov_b32 {self.z}, 0")
        k(f"buffer_store_dwordx2 {self.v}, {self.z}, {self.srd}, 0 offen sc0 sc1", "npub")
        k("s_nop 1")
        k.E.label(lab)
        k.E.restore(snap)
    def load(self, st=None):
        k = self.k; st = st or k
        st(f"v_mov_b32 {self.z}, 0")
        st(f"buffer_load_dwordx2 {self.v}, {self.z}, {self.srd}, 0 offen sc0 sc1", "nld")
    def get(self):
        k = self.k; E = k.E
        ok = E.newlabel("Lnok"); retry = E.newlabel("Lnretry")
        cnt = k.S()
        k(f"s_mov_b32 {cnt}, 0")
        k(f"v_readfirstlane_b32 {self.n[0]}, {self.v[0]}\nv_readfirstlane_b32 {self.n[1]}, {self.v[1]}")
        k(f"s_or_b32 s3, {self.n[0]}, {self.n[1]}")
        k(f"s_cmp_lg_u32 s3, 0")
        k(f"s_cbranch_scc1 {ok}")
        E.label(retry)
        E.raw(f"    buffer_load_dwordx2 {self.v}, {self.z}, {self.srd}, 0 offen sc0 sc1")
        E.raw("    s_waitcnt vmcnt(0)")
        E.raw(f"    v_readfirstlane_b32 {self.n[0]}, {self.v[0]}")
        E.raw(f"    v_readfirstlane_b32 {self.n[1]}, {self.v[1]}")
        E.raw(f"    s_add_u32 {cnt}, {cnt}, 1")
        E.raw(f"    s_nop 3")
        E.raw(f"    s_or_b32 s3, {self.n[0]}, {self.n[1]}")
        E.raw(f"    s_cmp_gt_u32 {cnt}, 20000")
        E.raw(f"    s_cbranch_scc1 {ok}")
        E.raw(f"    s_cmp_eq_u32 s3, 0")
        E.raw(f"    s_cbranch_scc1 {retry}")
        E.label(ok)
        k.s.free(cnt); k.v.free(self.v, self.z)


class Flags:
    def __init__(self, k, nonce):
        self.k, self.n = k, nonce
        self.srd = k.make_srd("flags", "ws", F_SIZE, WS_F)
    def publish(self, st, v2, voff, soff, tag="flag"):
        k = self.k
        def f(E):
            sv = self.k.S(2, 2)
            E(f"v_mov_b32 {v2[0]}, {self.n[0]}\nv_mov_b32 {v2[1]}, {self.n[1]}")
            E(f"s_mov_b64 {sv}, exec")
            E(f"s_mov_b64 exec, 1")
            E(f"buffer_store_dwordx2 {v2}, {voff}, {self.srd}, {soff} offen sc0 sc1", tag)
            E(f"s_mov_b64 exec, {sv}")
            self.k.s.free(sv)
        if hasattr(st, "do"): st.do(f)
        else: f(k.E)
    def load(self, st, dst, voff, soff="0"):
        n = len(dst)
        st(f"buffer_load_dwordx{n} {dst}, {voff}, {self.srd}, {soff} offen sc0 sc1", "flagld")
    def check(self, dst, voff, soff="0", slow_tmp=None):
        k = self.k; E = k.E
        n = len(dst) // 2
        def cmp(raw):
            put = (lambda t: E.raw("    " + t)) if raw else k
            put(f"v_cmp_ne_u64 vcc, {self.n}, {dst[0:2]}")
            if n == 2:
                m = self._m
                put(f"v_cmp_ne_u64 {m}, {self.n}, {dst[2:4]}")
                if raw: put("s_nop 4")
                put(f"s_or_b64 vcc, vcc, {m}")
            if raw: put("s_nop 4")
        self._m = k.S(2, 2); cnt = k.S()
        done = E.newlabel("Lfdone"); lab = E.newlabel("Lfpoll")
        k(f"s_mov_b32 {cnt}, 0")
        cmp(False)
        k(f"s_cbranch_vccz {done}")
        E.label(lab)
        E.raw(f"    buffer_load_dwordx{len(dst)} {dst}, {voff}, {self.srd}, {soff} offen sc0 sc1")
        E.raw("    s_waitcnt vmcnt(0)")
        cmp(True)
        E.raw(f"    s_add_u32 {cnt}, {cnt}, 1")
        E.raw(f"    s_cmp_gt_u32 {cnt}, 20000")
        E.raw(f"    s_cbranch_scc1 {done}")
        E.raw(f"    s_cbranch_vccnz {lab}")
        E.label(done)
        k.s.free(self._m, cnt)
```

```python
from asm import *

KA = dict(x=0, lre=8, lim=16, bre=24, bim=32, cre=40, cim=48, logdt=56, dskip=64, q=72, k=80, v=88,
          shk=96, ssk=104, ssd=112, gw=120, out=128, dbg=136, ws=144)
SIZE = dict(x=4 << 20, lre=2048, lim=2048, bre=2 << 20, bim=2 << 20, cre=2 << 20, cim=2 << 20, logdt=2048, dskip=2048,
            k=4 << 20, v=4 << 20, shk=8192, ssk=4 << 20, ssd=2048, gw=2048, out=8 << 20, dbg=256, ws=256 << 20)

import os
WS_BASE = int(os.environ.get("WS_BASE_MB", "0")) << 20
WS_H = WS_BASE + 0
WS_U = WS_BASE + (8 << 20)
WS_Y = WS_BASE + (12 << 20)
WS_C = WS_BASE + (16 << 20)
WS_G = WS_BASE + (20 << 20)
WS_S = WS_BASE + (20 << 20) + 65536
WS_F = WS_BASE + (20 << 20) + (512 << 10)
WS_T = WS_BASE + (22 << 20)
WS_X = WS_BASE + (24 << 20)
F_PU = 0
F_PC = 8192
F_H = 16384
F_Y = 24576
F_X = 32768
F_SIZE = 40960
F4_U = 0
F4_C = 8192
F4_H = 16384
F4_Y = 24576
WS_DUMP = 32 << 20
SENTINEL = 0xFFFFFFFF
KNAME = "gated_mix__ssm_conv_s5__ssm_conv_h3__prompt_kernel"
SRD3 = 0x00020000


class K:
    def __init__(self, name, nv=256, na=0):
        self.name = name
        self.E = Emitter(); self.E.prefix = name[:4] + "_"
        self.v = Alloc("v", 1, nv)
        self.a = Alloc("a", 0, max(na, 1))
        self.s = Alloc("s", 4, 100)
        self.nv, self.na = nv, na
        self.srds = {}
        self.ptrs = {}
    def __call__(self, text, tag=None):
        self.E(text, tag)
    def V(self, n=1, align=None, name=None): return self.v.alloc(n, align, name)
    def S(self, n=1, align=None, name=None): return self.s.alloc(n, align, name)
    def A(self, n=1, align=None, name=None): return self.a.alloc(n, align, name)

    def load_ptrs(self, names):
        for n in names:
            if n not in self.ptrs:
                p = self.S(2, 2); self.ptrs[n] = p
                self(f"s_load_dwordx2 {p}, s[0:1], {KA[n]}")
    def load_all_ptrs(self):
        a = self.S(16, 4); b = self.S(16, 4); c = self.S(4, 4); d = self.S(2, 2)
        self(f"s_load_dwordx16 {a}, s[0:1], 0")
        self(f"s_load_dwordx16 {b}, s[0:1], 64")
        self(f"s_load_dwordx4 {c}, s[0:1], 128")
        self(f"s_load_dwordx2 {d}, s[0:1], 144")
        for n, off in KA.items():
            if off < 64: self.ptrs[n] = a[off // 4:off // 4 + 2]
            elif off < 128: self.ptrs[n] = b[(off - 64) // 4:(off - 64) // 4 + 2]
            elif off < 144: self.ptrs[n] = c[(off - 128) // 4:(off - 128) // 4 + 2]
            else: self.ptrs[n] = d
    def free_ptrs(self, *names):
        for n in names: self.s.free(self.ptrs.pop(n))
    def make_srd(self, key, ptr, size, off=0, st=None):
        st = st or self
        r = self.S(4, 4)
        if ptr not in self.ptrs:
            assert off == 0
            st(f"s_load_dwordx2 {r[0:2]}, s[0:1], {KA[ptr]}")
        else:
            p = self.ptrs[ptr]
            if off:
                atomic(st, f"s_add_u32 {r[0]}, {p[0]}, {off}\ns_addc_u32 {r[1]}, {p[1]}, 0")
            else:
                st(f"s_mov_b32 {r[0]}, {p[0]}")
                st(f"s_mov_b32 {r[1]}, {p[1]}")
        st(f"s_mov_b32 {r[2]}, {size}")
        st(f"s_mov_b32 {r[3]}, {SRD3}")
        self.srds[key] = r
        return r
    def get_srd(self, key, ptr, size, off=0, st=None):
        return self.srds.get(key) or self.make_srd(key, ptr, size, off, st)
    def free_srd(self, *keys):
        for key in keys: self.s.free(self.srds.pop(key))


def kernel_text(k, vgpr_total=None, accum=None):
    nv = k.v.high
    accum = accum or ((nv + 3) // 4 * 4)
    na = k.a.high if k.na else 0
    total = vgpr_total or (accum + na)
    ns = max(k.s.high, 16)
    body = k.E.text()
    return f""".text
.globl {k.name}
.p2align 8
.type {k.name},@function
{k.name}:
{body}
.section .rodata,"a"
.p2align 6
.amdhsa_kernel {k.name}
  .amdhsa_next_free_vgpr {total}
  .amdhsa_next_free_sgpr {ns}
  .amdhsa_accum_offset {accum}
  .amdhsa_group_segment_fixed_size 0
  .amdhsa_kernarg_size 152
  .amdhsa_user_sgpr_count 2
  .amdhsa_user_sgpr_kernarg_segment_ptr 1
  .amdhsa_system_sgpr_workgroup_id_x 1
  .amdhsa_float_denorm_mode_32 3
.end_amdhsa_kernel
"""

HEADER_ARGS = open(__file__.replace("common.py", "header.txt")).read()

def file_text(launches, kernels):
    out = HEADER_ARGS
    if len(launches) == 1 and launches[0][0] == KNAME:
        n, g, b, l = launches[0]
        out += f"; @launch grid=({g},1,1) block=({b},1,1) lds={l}\n"
    else:
        for n, g, b, l in launches:
            out += f"; @launch kernel={n} grid=({g},1,1) block=({b},1,1) lds={l}\n"
    out += '.amdgcn_target "amdgcn-amd-amdhsa--gfx950"\n'
    for t in kernels:
        out += t
    return out


class Stamps:
    def __init__(self, k, enable=True, n=0):
        self.k, self.names, self.regs, self.enable = k, [], [], enable
        self.pre = [k.S(2, 2) for _ in range(n)]
    realtime = False
    def __call__(self, name):
        if not self.enable: return
        r = self.pre.pop(0) if self.pre else self.k.S(2, 2)
        self.names.append(name); self.regs.append(r)
        self.k(f"s_memrealtime {r}" if (name.startswith("rt") or self.realtime) else f"s_memtime {r}")
    def flush_dbg(self, srd):
        k = self.k
        k.E.wait_all()
        t = k.V(); o = k.V()
        k("s_mov_b64 exec, 1")
        for i, r in enumerate(self.regs):
            k(f"v_mov_b32 {t}, {r[0]}\nv_mov_b32 {o}, {8 + 4 * i}")
            k(f"buffer_atomic_umax {t}, {o}, {srd}, 0 offen")
            k("s_nop 1")
        k.E.wait_all()
    def flush(self, slot=0):
        if not self.enable: return
        k = self.k
        k.E.wait_all()
        srd = k.make_srd("stamps", "ws", 1 << 20, WS_T + slot * 65536 * 4)
        t = k.V(2, 2); o = k.V()
        k(f"v_lshrrev_b32 {o}, 6, v0")
        k(f"v_lshlrev_b32 {o}, 8, {o}")
        k(f"s_lshl_b32 s3, s2, 10")
        k(f"v_add_u32 {o}, s3, {o}")
        for i, r in enumerate(self.regs):
            k(f"v_mov_b32 {t[0]}, {r[0]}\nv_mov_b32 {t[1]}, {r[1]}")
            k(f"buffer_store_dwordx2 {t}, {o}, {srd}, 0 offen offset:{8 * i}")
            k("s_nop 1")
        k.E.wait_all()


class Nonce:
    def __init__(self, k, w, late=False):
        self.k, self.w = k, w
        self.n = k.S(2, 2, "nonce")
        if late: k(f"s_memrealtime {self.n}", "nt")
        else: self.alloc()
    def alloc(self):
        k = self.k
        self.srd = k.get_srd("dbg", "dbg", 256)
        self.v = k.V(2, 2); self.z = k.V()
    def publish(self, have_time=False):
        k = self.k
        lab = k.E.newlabel("Lnonce")
        if have_time: k.E.wait_tag("nt")
        snap = k.E.snapshot()
        k(f"s_or_b32 s3, s2, {self.w}")
        k(f"s_cmp_lg_u32 s3, 0")
        k(f"s_cbranch_scc1 {lab}")
        if not have_time:
            k(f"s_memrealtime {self.n}", "nt")
            k.E.wait_tag("nt")
        k(f"v_mov_b32 {self.v[0]}, {self.n[0]}\nv_mov_b32 {self.v[1]}, {self.n[1]}\nv_mov_b32 {self.z}, 0")
        k(f"buffer_store_dwordx2 {self.v}, {self.z}, {self.srd}, 0 offen sc0 sc1", "npub")
        k("s_nop 1")
        k.E.label(lab)
        k.E.restore(snap)
    def load(self, st=None):
        k = self.k; st = st or k
        st(f"v_mov_b32 {self.z}, 0")
        st(f"buffer_load_dwordx2 {self.v}, {self.z}, {self.srd}, 0 offen sc0 sc1", "nld")
    def get(self):
        k = self.k; E = k.E
        ok = E.newlabel("Lnok"); retry = E.newlabel("Lnretry")
        cnt = k.S()
        k(f"s_mov_b32 {cnt}, 0")
        k(f"v_readfirstlane_b32 {self.n[0]}, {self.v[0]}\nv_readfirstlane_b32 {self.n[1]}, {self.v[1]}")
        k(f"s_or_b32 s3, {self.n[0]}, {self.n[1]}")
        k(f"s_cmp_lg_u32 s3, 0")
        k(f"s_cbranch_scc1 {ok}")
        E.label(retry)
        E.raw(f"    buffer_load_dwordx2 {self.v}, {self.z}, {self.srd}, 0 offen sc0 sc1")
        E.raw("    s_waitcnt vmcnt(0)")
        E.raw(f"    v_readfirstlane_b32 {self.n[0]}, {self.v[0]}")
        E.raw(f"    v_readfirstlane_b32 {self.n[1]}, {self.v[1]}")
        E.raw(f"    s_add_u32 {cnt}, {cnt}, 1")
        E.raw(f"    s_nop 3")
        E.raw(f"    s_or_b32 s3, {self.n[0]}, {self.n[1]}")
        E.raw(f"    s_cmp_gt_u32 {cnt}, 20000")
        E.raw(f"    s_cbranch_scc1 {ok}")
        E.raw(f"    s_cmp_eq_u32 s3, 0")
        E.raw(f"    s_cbranch_scc1 {retry}")
        E.label(ok)
        k.s.free(cnt); k.v.free(self.v, self.z)


class Flags:
    def __init__(self, k, nonce):
        self.k, self.n = k, nonce
        self.srd = k.make_srd("flags", "ws", F_SIZE, WS_F)
    def publish(self, st, v2, voff, soff, tag="flag"):
        k = self.k
        def f(E):
            sv = self.k.S(2, 2)
            E(f"v_mov_b32 {v2[0]}, {self.n[0]}\nv_mov_b32 {v2[1]}, {self.n[1]}")
            E(f"s_mov_b64 {sv}, exec")
            E(f"s_mov_b64 exec, 1")
            E(f"buffer_store_dwordx2 {v2}, {voff}, {self.srd}, {soff} offen sc0 sc1", tag)
            E(f"s_mov_b64 exec, {sv}")
            self.k.s.free(sv)
        if hasattr(st, "do"): st.do(f)
        else: f(k.E)
    def load(self, st, dst, voff, soff="0"):
        n = len(dst)
        st(f"buffer_load_dwordx{n} {dst}, {voff}, {self.srd}, {soff} offen sc0 sc1", "flagld")
    def check(self, dst, voff, soff="0", slow_tmp=None):
        k = self.k; E = k.E
        n = len(dst) // 2
        def cmp(raw):
            put = (lambda t: E.raw("    " + t)) if raw else k
            put(f"v_cmp_ne_u64 vcc, {self.n}, {dst[0:2]}")
            if n == 2:
                m = self._m
                put(f"v_cmp_ne_u64 {m}, {self.n}, {dst[2:4]}")
                if raw: put("s_nop 4")
                put(f"s_or_b64 vcc, vcc, {m}")
            if raw: put("s_nop 4")
        self._m = k.S(2, 2); cnt = k.S()
        done = E.newlabel("Lfdone"); lab = E.newlabel("Lfpoll")
        k(f"s_mov_b32 {cnt}, 0")
        cmp(False)
        k(f"s_cbranch_vccz {done}")
        E.label(lab)
        E.raw(f"    buffer_load_dwordx{len(dst)} {dst}, {voff}, {self.srd}, {soff} offen sc0 sc1")
        E.raw("    s_waitcnt vmcnt(0)")
        cmp(True)
        E.raw(f"    s_add_u32 {cnt}, {cnt}, 1")
        E.raw(f"    s_cmp_gt_u32 {cnt}, 20000")
        E.raw(f"    s_cbranch_scc1 {done}")
        E.raw(f"    s_cbranch_vccnz {lab}")
        E.label(done)
        k.s.free(self._m, cnt)
```
